```python
import torch

def _softmax(x, axis=-1):
    return torch.softmax(x, dim=axis)
def _gelu(x):
    return torch.nn.functional.gelu(x, approximate="tanh")
def _silu(x):
    return torch.nn.functional.silu(x)
def _sigmoid(x):
    return torch.sigmoid(x)
def _layernorm(x, axis=-1, eps=1e-5):
    m = x.mean(dim=axis, keepdim=True)
    v = x.var(dim=axis, keepdim=True, unbiased=False)
    return (x - m) / torch.sqrt(v + eps)
def _scatter_add(tgt, idx, src, axis=0):
    return tgt.clone().index_add_(axis, idx, src)
def _segment_sum(src, seg, n):
    out = torch.zeros((n,) + src.shape[1:], dtype=src.dtype)
    return out.index_add_(0, seg, src)
def _pad(x, pw):
    flat = tuple(v for pair in reversed(pw) for v in pair)
    return torch.nn.functional.pad(x, flat)

kernel_name = 'parallel_sum__mha_block__dense_activation_mish__prompt'

def setup_inputs():

    _w = (lambda a: (lambda t: t.to(torch.bfloat16) if t.is_floating_point() else t)(torch.as_tensor(a)))
    def _A_setup():
        B, S, D, H = 1, 2048, 512, 32
        return {
            "x": _w((lambda *s: torch.randn(*s, dtype=torch.bfloat16) * 0.05)(B, S, D)),
            "wqkv": _w((lambda *s: torch.randn(*s, dtype=torch.bfloat16) * 0.05)(D, 3 * D)),
            "wo": _w((lambda *s: torch.randn(*s, dtype=torch.bfloat16) * 0.05)(D, D)),
        }
    _A_in = _A_setup()

    def _B_setup():
        B, S, D, F = 1, 2048, 512, 1792
        return {
            "x": _w((lambda *s: torch.randn(*s, dtype=torch.bfloat16) * 0.05)(B, S, D)),
            "w1": _w((lambda *s: torch.randn(*s, dtype=torch.bfloat16) * 0.8)(D, F) * (D ** -0.5)),
            "b1": _w((lambda *s: torch.randn(*s, dtype=torch.bfloat16) * 0.8)(F)),
            "w2": _w((lambda *s: torch.randn(*s, dtype=torch.bfloat16) * 0.2)(F, D) * (F ** -0.5)),
        }
    _B_in = _B_setup()

    return {
        "A_x": _A_in["x"],
        "A_wqkv": _A_in["wqkv"],
        "A_wo": _A_in["wo"],
        "B_x": _B_in["x"],
        "B_w1": _B_in["w1"],
        "B_b1": _B_in["b1"],
        "B_w2": _B_in["w2"],
    }

def reference(A_x, A_wqkv, A_wo, B_x, B_w1, B_b1, B_w2):
    def _A_ref(x, wqkv, wo):
        B, S, D = x.shape
        H = 32
        Dh = D // H
        qkv = (lambda x, *d: x.permute(*d))((x @ wqkv).reshape(B, S, 3, H, Dh), 2, 0, 3, 1, 4)
        q, k, v = qkv[0], qkv[1], qkv[2]
        scores = torch.einsum("bhqd,bhkd->bhqk", q, k) * (Dh ** -0.5)
        p = _softmax(scores, axis=-1)
        o = torch.einsum("bhqk,bhkd->bhqd", p, v)
        return (lambda x, *d: x.permute(*d))(o, 0, 2, 1, 3).reshape(B, S, D) @ wo

    def _B_ref(x, w1, b1, w2):
        h = torch.einsum("bsd,df->bsf", x, w1) + b1
        sp = torch.log1p(torch.exp(-torch.abs(h))) + torch.where(h > 0, h, torch.zeros_like(h))
        act = h * torch.tanh(sp)
        return torch.einsum("bsf,fd->bsd", act, w2)

    x = A_x
    xn = _layernorm(x, axis=-1)
    return x + _A_ref(xn, A_wqkv, A_wo) + _B_ref(xn, B_w1, B_b1, B_w2)
```

```python
class Asm:
    def __init__(self):
        self.lines = []
        self._lab = 0
    def __call__(self, s):
        for l in s.split("\n"):
            l = l.strip()
            if l:
                self.lines.append("    " + l)
    def label(self, l):
        self.lines.append(l + ":")
    def newlabel(self, p="L"):
        self._lab += 1
        return f"{p}_{self._lab}"
    def comment(self, s):
        self.lines.append("    ; " + s)
    def raw(self, s):
        self.lines.append(s)
    def text(self):
        return "\n".join(self.lines) + "\n"

def vr(a, n):
    return f"v[{a}:{a+n-1}]" if n > 1 else f"v{a}"
def ar(a, n):
    return f"a[{a}:{a+n-1}]" if n > 1 else f"a{a}"
def sr(a, n):
    return f"s[{a}:{a+n-1}]" if n > 1 else f"s{a}"

def kernel_header(name):
    return f""".text
.globl {name}
.p2align 8
.type {name},@function
{name}:
"""
def kernel_desc(name, vgpr, sgpr=96, accum=None, agpr=0):
    if accum is None:
        accum = (vgpr + 3) // 4 * 4
    nfv = accum + agpr if agpr else vgpr
    return f""".section .rodata,"a"
.p2align 6
.amdhsa_kernel {name}
  .amdhsa_next_free_vgpr {nfv}
  .amdhsa_next_free_sgpr {sgpr}
  .amdhsa_accum_offset {accum}
  .amdhsa_group_segment_fixed_size 0
  .amdhsa_kernarg_size 80
  .amdhsa_user_sgpr_count 2
  .amdhsa_user_sgpr_kernarg_segment_ptr 1
  .amdhsa_system_sgpr_workgroup_id_x 1
  .amdhsa_float_denorm_mode_32 3
.end_amdhsa_kernel
"""

MB = 1 << 20
WS_QF = 0
WS_KF = 2 * MB
WS_VF = 4 * MB
WS_OF = 6 * MB
WS_ACT = 8 * MB
WS_W2F = 16 * MB
WS_WOF = 18 * MB
WS_F2 = 20 * MB
WS_SIZE = 268435456

def interleave(main, fill, ratio=None):
    out = []
    n, m = len(main), len(fill)
    j = 0
    for i, x in enumerate(main):
        out.append(x)
        tgt = (i + 1) * m // n
        while j < tgt:
            out.append(fill[j]); j += 1
    out += fill[j:]
    return out
```

```python
from asm import *

LOG2E = 1.4426950408889634
import struct
def f32bits(x):
    return struct.unpack("<I", struct.pack("<f", x))[0]

class VM:
    def __init__(self): self.ops = []
    def issue(self, tag): self.ops.append(tag)
    def count_after(self, tag):
        idx = max(i for i, t in enumerate(self.ops) if t == tag)
        return len(self.ops) - 1 - idx
    def copy(self):
        v = VM(); v.ops = list(self.ops); return v

S0, S1, S2, S4 = 0, 32768, 65536, 131072
SCR = 98304
L_EXT = SCR
L_RSTD = SCR + 4096
L_CS = SCR + 5120
L_PREP = SCR + 10240

def gen_k1(name="gemm1_kernel", stamps=False):
    A = Asm()
    vX, vACC, vST, vW = 128, 96, 112, 80
    vWA = 76
    vWB = 72
    vXE = 68
    vWE = 64
    vRS, vCS, vBIAS = 63, 62, 61
    vDW_Q, vDW_1, vDP = 60, 59, 58
    vVO = 57
    vPR = 56
    vT = 8
    sX, sWQ, sW1, sWS, sB1, sW2, sWO = 24, 28, 32, 36, 40, 44, 48
    sW, sRG, sCG, sRB, sCB, sHB, sTT = 52, 53, 54, 55, 56, 57, 58
    sT0, sT1, sT2, sT3 = 60, 61, 62, 63
    sONES = 64
    sEVEN = 65
    def stamp(i):
        if stamps:
            A(f"s_memtime s[{70+2*i}:{71+2*i}]")
    A.raw(kernel_header(name))
    A(f"""
    s_cmp_ge_u32 s2, 256
    s_cbranch_scc1 {name}_end
    s_load_dwordx4 s[4:7], s[0:1], 0
    s_load_dwordx2 s[18:19], s[0:1], 16
    s_load_dwordx4 s[12:15], s[0:1], 32
    s_load_dwordx2 s[16:17], s[0:1], 48
    s_load_dwordx2 s[20:21], s[0:1], 72
    v_and_b32 v1, 63, v0
    v_lshrrev_b32 v5, 6, v0
    v_lshlrev_b32 v2, 4, v1
    v_readfirstlane_b32 s{sW}, v5
    s_and_b32 s{sT0}, s2, 7
    s_lshr_b32 s{sT1}, s2, 3
    s_and_b32 s{sT2}, s{sT0}, 1
    s_lshl_b32 s{sT2}, s{sT2}, 3
    s_and_b32 s{sT3}, s{sT1}, 7
    s_add_u32 s{sRB}, s{sT2}, s{sT3}
    s_lshr_b32 s{sT2}, s{sT0}, 1
    s_lshl_b32 s{sT2}, s{sT2}, 2
    s_lshr_b32 s{sT3}, s{sT1}, 3
    s_add_u32 s{sCB}, s{sT2}, s{sT3}
    s_and_b32 s{sRG}, s{sW}, 3
    s_lshr_b32 s{sCG}, s{sW}, 2
    s_lshr_b32 s{sT0}, s{sCB}, 1
    s_mul_i32 s{sHB}, s{sT0}, 7
    s_and_b32 s{sT0}, s{sCB}, 1
    s_xor_b32 s{sEVEN}, s{sT0}, 1
    s_lshl_b32 s{sT0}, s{sT0}, 2
    s_add_u32 s{sHB}, s{sHB}, s{sT0}
    s_lshl_b32 s{sTT}, s{sRB}, 2
    s_add_u32 s{sTT}, s{sTT}, s{sRG}
    s_mov_b32 s{sONES}, 0x3f803f80
    """)
    for srd, nb in ((sX, 2048*1024), (sWQ, 512*3072), (sW1, 512*3584), (sWS, WS_SIZE), (sB1, 1792*2), (sW2, 1792*1024), (sWO, 512*1024)):
        A(f"s_mov_b32 s{srd+2}, {nb}")
        A(f"s_mov_b32 s{srd+3}, 0x20000")
    A("s_waitcnt lgkmcnt(0)")
    for srd, p in ((sX, 4), (sWQ, 6), (sW1, 12), (sWS, 20), (sB1, 14), (sW2, 16), (sWO, 18)):
        A(f"s_mov_b32 s{srd}, s{p}")
        A(f"s_and_b32 s{srd+1}, s{p+1}, 0xffff")
    stamp(0)
    vm = VM()
    A(f"""
    s_lshl_b32 s{sT0}, s{sW}, 14
    s_lshl_b32 s{sT1}, s{sRB}, 17         ; rb*128*1024
    s_add_u32 s{sT1}, s{sT1}, s{sT0}
    """)
    for i in range(16):
        if i % 4 == 0:
            A(f"s_add_u32 s{sT2}, s{sT0}, {i*1024}")
            A(f"s_mov_b32 m0, s{sT2}")
            A(f"s_add_u32 s{sT3}, s{sT1}, {i*1024}")
        A(f"v_xor_b32 v{vT+(i&3)}, {i*16}, v2")
        A(f"buffer_load_dwordx4 v{vT+(i&3)}, s[{sX}:{sX+3}], s{sT3} offen offset:{(i%4)*1024} lds")
        vm.issue("x")
    A(f"""
    v_lshrrev_b32 v5, 2, v1
    v_and_b32 v6, 3, v1
    v_lshlrev_b32 v6, 4, v6
    v_mul_u32_u24 v{vDW_Q}, 3072, v5
    v_add_u32 v{vDW_Q}, v{vDW_Q}, v6
    v_mul_u32_u24 v{vDW_1}, 3584, v5
    v_add_u32 v{vDW_1}, v{vDW_1}, v6
    v_lshlrev_b32 v{vDP}, 10, v5
    v_add_u32 v{vDP}, v{vDP}, v6
    """)
    def dma_w(kind, slot, tag, vm):
        if kind[0] == 'H':
            ld, srd, vo = 3584, sW1, vDW_1
            A(f"s_add_u32 s{sT0}, s{sHB}, {kind[1]}")
            A(f"s_lshl_b32 s{sT0}, s{sT0}, 6")
        else:
            ld, srd, vo = 3072, sWQ, vDW_Q
            A(f"s_lshl_b32 s{sT0}, s{sCB}, 6")
            off = {'Q': 0, 'K': 1024, 'V': 2048}[kind[0]]
            if off: A(f"s_add_u32 s{sT0}, s{sT0}, {off}")
        A(f"s_mul_i32 s{sT1}, s{sW}, {64*ld}")
        A(f"s_add_u32 s{sT0}, s{sT0}, s{sT1}")
        A(f"s_lshl_b32 s{sT1}, s{sW}, 12")
        A(f"s_add_u32 s{sT1}, s{sT1}, {slot}")
        for j in range(4):
            A(f"s_mov_b32 m0, s{sT1}")
            if j < 3:
                A(f"s_add_u32 s{sT1}, s{sT1}, 1024")
            else:
                A("s_nop 0")
            A(f"buffer_load_dwordx4 v{vo}, s[{srd}:{srd+3}], s{sT0} offen lds")
            vm.issue(tag)
            if j < 3: A(f"s_add_u32 s{sT0}, s{sT0}, {16*ld}")
    dma_w(('H', 0), S4, "Ha", vm)
    A(f"""
    v_lshrrev_b32 v5, 5, v1
    v_lshlrev_b32 v5, 9, v5
    v_bfe_u32 v6, v1, 2, 2
    v_lshlrev_b32 v6, 6, v6
    v_add_u32 v5, v5, v6
    v_bfe_u32 v6, v1, 4, 1
    v_lshlrev_b32 v6, 5, v6
    v_add_u32 v5, v5, v6
    v_and_b32 v6, 3, v1
    v_lshlrev_b32 v6, 3, v6
    v_add_u32 v5, v5, v6
    v_lshrrev_b32 v6, 5, v1
    v_lshlrev_b32 v6, 8, v6
    v_sub_u32 v{vPR}, v5, v6
    """)
    for b in range(4):
        A(f"s_add_u32 s{sT0}, s{sRG}, {b}")
        A(f"s_and_b32 s{sT0}, s{sT0}, 3")
        A(f"s_lshl_b32 s{sT1}, s{sT0}, 13")
        A(f"v_add_u32 v{vWB+b}, s{sT1}, v5")
        A(f"s_lshl_b32 s{66+b}, s{sT0}, 8")
    A(f"""
    v_and_b32 v5, 31, v1
    v_lshlrev_b32 v6, 10, v5
    s_lshl_b32 s{sT0}, s{sRG}, 15
    v_add_u32 v6, s{sT0}, v6
    v_and_b32 v7, 15, v1
    v_lshlrev_b32 v7, 4, v7
    v_lshrrev_b32 v5, 5, v1
    v_lshlrev_b32 v5, 4, v5
    v_xor_b32 v7, v7, v5
    v_add_u32 v6, v6, v7
    v_bfe_u32 v5, v1, 4, 1
    v_lshlrev_b32 v5, 16, v5
    v_lshrrev_b32 v7, 5, v1
    v_lshlrev_b32 v7, 8, v7
    v_add_u32 v5, v5, v7
    v_and_b32 v7, 15, v1
    v_lshlrev_b32 v7, 4, v7
    v_add_u32 v{vVO}, v5, v7
    """)
    for b in range(4):
        A(f"v_add_u32 v{vT+b}, s{66+b}, v6")
    A("s_waitcnt vmcnt(0)")
    A("s_barrier")
    stamp(1)
    for i in range(32):
        b = i >> 3
        A(f"v_xor_b32 v{vT+4+(i&7)}, {(i&7)*32}, v{vT+b}")
        A(f"ds_read_b128 {vr(vX+4*i,4)}, v{vT+4+(i&7)}")
    A("s_waitcnt lgkmcnt(0)")
    A("s_barrier")
    stamp(2)
    vm = VM()
    dma_w(('H', 1), S0, "Hb", vm)
    dma_w(('H', 2), S1, "Hc", vm)
    dma_w(('H', 3), S2, "Hd", vm)
    A(f"s_cmp_eq_u32 s{sCG}, 0")
    A(f"s_cbranch_scc0 {name}_cg1")

    def set_slot(slot):
        for b in range(4):
            A(f"v_add_u32 v{vWA+b}, {slot}, v{vWB+b}")
    def main(orient, csbuf):
        def rd(i):
            b = i >> 3
            w = vW + 4*(i & 3)
            A(f"ds_read_b64_tr_b16 {vr(w,2)}, v{vWA+b} offset:{(i&7)*1024}")
            A(f"ds_read_b64_tr_b16 {vr(w+2,2)}, v{vWA+b} offset:{(i&7)*1024+256}")
        for i in range(3): rd(i)
        A(f"v_mov_b32 v{vCS}, 0")
        for i in range(32):
            if i + 3 < 32:
                rd(i + 3)
                A("s_waitcnt lgkmcnt(6)")
            else:
                A(f"s_waitcnt lgkmcnt({2*(31-i)})")
            w = vW + 4*(i & 3)
            c = "0" if i == 0 else vr(vACC, 16)
            if orient == 'N':
                A(f"v_mfma_f32_32x32x16_bf16 {vr(vACC,16)}, {vr(w,4)}, {vr(vX+4*i,4)}, {c}")
            else:
                A(f"v_mfma_f32_32x32x16_bf16 {vr(vACC,16)}, {vr(vX+4*i,4)}, {vr(w,4)}, {c}")
            if i < 8:
                for j in range(4):
                    A(f"v_dot2c_f32_bf16 v{vCS}, s{sONES}, v{w+j}")
            if i == 8:
                A(f"s_lshl_b32 s{sT0}, s{sRG}, 8")
                A(f"s_add_u32 s{sT0}, s{sT0}, {csbuf}")
                A(f"v_lshlrev_b32 v5, 2, v1")
                A(f"v_add_u32 v5, s{sT0}, v5")
                A(f"ds_write_b32 v5, v{vCS}")
                A("s_waitcnt lgkmcnt(0)")
    def load_bias(j, vm):
        A(f"s_add_u32 s{sT0}, s{sHB}, {j}")
        A(f"s_lshl_b32 s{sT0}, s{sT0}, 6")
        A(f"v_and_b32 v5, 31, v1")
        A(f"v_lshlrev_b32 v5, 1, v5")
        A(f"buffer_load_ushort v{vBIAS}, v5, s[{sB1}:{sB1+3}], s{sT0} offen")
        vm.issue("bias")
    def ext(orient, csbuf, bias, vm):
        t = vT
        A(f"v_and_b32 v5, 31, v1")
        A(f"v_lshlrev_b32 v5, 2, v5")
        A(f"v_add_u32 v5, {csbuf}, v5")
        for j in range(4):
            A(f"ds_read2_b32 {vr(t+2*j,2)}, v5 offset0:{j*64} offset1:{j*64+32}")
        A("s_waitcnt lgkmcnt(0)")
        A(f"v_add_f32 v{t}, v{t}, v{t+1}")
        A(f"v_add_f32 v{t+2}, v{t+2}, v{t+3}")
        A(f"v_add_f32 v{t+4}, v{t+4}, v{t+5}")
        A(f"v_add_f32 v{t+6}, v{t+6}, v{t+7}")
        A(f"v_add_f32 v{t}, v{t}, v{t+2}")
        A(f"v_add_f32 v{t+4}, v{t+4}, v{t+6}")
        A(f"v_add_f32 v{t}, v{t}, v{t+4}")
        A(f"v_cvt_pk_bf16_f32 v{t+1}, v{t}, v{t}")
        A(f"v_and_b32 v{t+1}, 0xffff0000, v{t+1}")
        A(f"v_sub_f32 v{t+1}, v{t}, v{t+1}")
        A(f"v_cvt_pk_bf16_f32 v{vWE}, v{t}, v{t+1}")
        A(f"v_mov_b32 v{vWE+1}, v{vWE}")
        if bias:
            A(f"s_waitcnt vmcnt({vm.count_after('bias')})")
            A(f"v_lshl_or_b32 v{vWE+2}, v{vBIAS}, 16, v{vBIAS}")
        else:
            A(f"v_mov_b32 v{vWE+2}, 0")
        A(f"v_mov_b32 v{vWE+3}, 0")
        A("s_nop 1")
        if orient == 'N':
            A(f"v_mfma_f32_32x32x16_bf16 {vr(vST,16)}, {vr(vWE,4)}, {vr(vXE,4)}, {vr(vACC,16)}")
        else:
            A(f"v_mfma_f32_32x32x16_bf16 {vr(vST,16)}, {vr(vXE,4)}, {vr(vWE,4)}, {vr(vACC,16)}")
    def mfma_wait():
        A("s_nop 15")
        A("s_nop 3")
    def epi_h(j, vm):
        t = vT
        A(f"v_mul_f32 v{t}, 0x{f32bits(LOG2E):08x}, v{vRS}")
        A(f"v_mul_f32 v{t+1}, -2.0, v{vRS}")
        for r in range(16):
            a = vST + r
            e = t + 2 + (r & 3) * 3
            A(f"v_mul_f32 v{e}, v{a}, v{t}")
            A(f"v_exp_f32 v{e}, v{e}")
            A("s_nop 0")
            A(f"v_add_f32 v{e+1}, 2.0, v{e}")
            A(f"v_fma_f32 v{e+1}, v{e}, v{e+1}, 2.0")
            A(f"v_rcp_f32 v{e+1}, v{e+1}")
            A("s_nop 0")
            A(f"v_fma_f32 v{e+1}, v{e+1}, v{t+1}, v{vRS}")
            A(f"v_mul_f32 v{a}, v{a}, v{e+1}")
        o = t + 16
        for i in range(8):
            A(f"v_cvt_pk_bf16_f32 v{o+i}, v{vST+2*i}, v{vST+2*i+1}")
        A(f"s_mul_i32 s{sT0}, s{sTT}, 112")
        A(f"s_add_u32 s{sT1}, s{sHB}, {j}")
        A(f"s_lshl_b32 s{sT1}, s{sT1}, 1")
        A(f"s_add_u32 s{sT0}, s{sT0}, s{sT1}")
        A(f"s_lshl_b32 s{sT0}, s{sT0}, 10")
        A(f"s_add_u32 s{sT0}, s{sT0}, {WS_ACT}")
        A(f"buffer_store_dwordx4 {vr(o,4)}, v2, s[{sWS}:{sWS+3}], s{sT0} offen")
        A(f"buffer_store_dwordx4 {vr(o+4,4)}, v2, s[{sWS}:{sWS+3}], s{sT0} offen offset:1024")
        vm.issue("st"); vm.issue("st")
        A("s_nop 1")
    def epi_qk(kind, vm):
        t = vT
        if kind == 'Q':
            A(f"v_mul_f32 v{t}, 0x{f32bits(0.25*LOG2E):08x}, v{vRS}")
        else:
            A(f"v_mov_b32 v{t}, v{vRS}")
        for r in range(16):
            A(f"v_mul_f32 v{vST+r}, v{vST+r}, v{t}")
        o = t + 16
        for i in range(8):
            A(f"v_cvt_pk_bf16_f32 v{o+i}, v{vST+2*i}, v{vST+2*i+1}")
        base = WS_QF if kind == 'Q' else WS_KF
        A(f"s_lshl_b32 s{sT0}, s{sCB}, 17")
        A(f"s_lshl_b32 s{sT1}, s{sTT}, 10")
        A(f"s_add_u32 s{sT0}, s{sT0}, s{sT1}")
        A(f"s_add_u32 s{sT0}, s{sT0}, {base}")
        A(f"s_add_u32 s{sT1}, s{sT0}, 65536")
        A(f"buffer_store_dwordx4 {vr(o,4)}, v2, s[{sWS}:{sWS+3}], s{sT0} offen")
        A(f"buffer_store_dwordx4 {vr(o+4,4)}, v2, s[{sWS}:{sWS+3}], s{sT1} offen")
        vm.issue("st"); vm.issue("st")
        A("s_nop 1")
    def epi_v(vm):
        t = vT
        A(f"v_lshrrev_b32 v5, 5, v1")
        A(f"v_lshlrev_b32 v5, 4, v5")
        A(f"s_lshl_b32 s{sT0}, s{sRG}, 7")
        A(f"s_add_u32 s{sT0}, s{sT0}, {L_RSTD}")
        A(f"v_add_u32 v5, s{sT0}, v5")
        for g in range(4):
            A(f"ds_read_b128 {vr(t+4*g,4)}, v5 offset:{g*32}")
        A("s_waitcnt lgkmcnt(0)")
        for r in range(16):
            A(f"v_mul_f32 v{vST+r}, v{vST+r}, v{t+r}")
        o = t + 16
        for i in range(8):
            A(f"v_cvt_pk_bf16_f32 v{o+i}, v{vST+2*i}, v{vST+2*i+1}")
        A(f"s_lshl_b32 s{sT0}, s{sCB}, 17")
        A(f"s_lshl_b32 s{sT1}, s{sTT}, 10")
        A(f"s_add_u32 s{sT0}, s{sT0}, s{sT1}")
        A(f"s_add_u32 s{sT0}, s{sT0}, {WS_VF}")
        A(f"buffer_store_dwordx4 {vr(o,4)}, v{vVO}, s[{sWS}:{sWS+3}], s{sT0} offen")
        A(f"buffer_store_dwordx4 {vr(o+4,4)}, v{vVO}, s[{sWS}:{sWS+3}], s{sT0} offen offset:512")
        vm.issue("st"); vm.issue("st")
        A("s_nop 1")
    def bar(vm, tags):
        n = min(vm.count_after(t) for t in tags) if tags else None
        if n is not None:
            A(f"s_waitcnt vmcnt({n}) lgkmcnt(0)")
        else:
            A("s_waitcnt lgkmcnt(0)")
        A("s_barrier")
    CS = lambda cg, p: L_CS + (cg*2 + (p & 1)) * 1024

    v0 = vm.copy()
    load_bias(0, v0)
    set_slot(S4)
    main('N', CS(0, 0))
    bar(v0, ["Hb", "Hc"])
    stamp(3)
    dma_w(('V',), S4, "V", v0)
    A(f"s_lshl_b32 s{sT0}, s{sRG}, 10")
    A(f"s_add_u32 s{sT0}, s{sT0}, {L_EXT}")
    A(f"v_add_u32 v5, s{sT0}, v2")
    A(f"ds_read_b128 {vr(vXE,4)}, v5")
    A(f"v_and_b32 v5, 31, v1")
    A(f"v_lshlrev_b32 v5, 2, v5")
    A(f"s_lshl_b32 s{sT0}, s{sRG}, 7")
    A(f"s_add_u32 s{sT0}, s{sT0}, {L_RSTD}")
    A(f"v_add_u32 v5, s{sT0}, v5")
    A(f"ds_read_b32 v{vRS}, v5")
    ext('N', CS(0, 0), True, v0)
    load_bias(1, v0)
    set_slot(S0)
    mfma_wait()
    epi_h(0, v0)
    main('N', CS(0, 1))
    bar(v0, ["Hd", "V"])
    stamp(4)
    dma_w(('Q',), S0, "Q", v0)
    dma_w(('K',), S1, "K", v0)
    ext('N', CS(0, 1), True, v0)
    load_bias(3, v0)
    set_slot(S2)
    mfma_wait()
    epi_h(1, v0)
    A(f"s_cmp_eq_u32 s{sEVEN}, 0")
    A(f"s_cbranch_scc1 {name}_c0_skip1")
    main('N', CS(0, 0))
    A.label(f"{name}_c0_skip1")
    bar(v0, ["Q", "K"])
    stamp(5)
    A(f"s_cmp_eq_u32 s{sEVEN}, 0")
    A(f"s_cbranch_scc1 {name}_c0_skip2")
    ve = v0.copy()
    ext('N', CS(0, 0), True, ve)
    mfma_wait()
    epi_h(3, ve)
    A.label(f"{name}_c0_skip2")
    set_slot(S0)
    main('N', CS(0, 1))
    bar(v0, [])
    stamp(6)
    ext('N', CS(0, 1), False, v0)
    mfma_wait()
    epi_qk('Q', v0)
    A(f"s_branch {name}_done")

    A.label(f"{name}_cg1")
    v1 = vm.copy()
    def prep_params(jadd, slot):
        A(f"s_and_b32 s{sT0}, s2, 15")
        A(f"s_mul_i32 s{sT0}, s{sT0}, 9")
        A(f"s_add_u32 s{sT0}, s{sT0}, s{sRG}")
        if jadd: A(f"s_add_u32 s{sT0}, s{sT0}, {jadd}")
        A(f"s_lshr_b32 s{sT3}, s2, 4")
        A(f"s_sub_u32 s{sT1}, s{sT0}, 32")
        A(f"s_cmp_lt_u32 s{sT0}, 32")
        A(f"s_cselect_b32 s88, s{sWO}, s{sW2}")
        A(f"s_cselect_b32 s89, s{sWO+1}, s{sW2+1}")
        A(f"s_cselect_b32 s90, s{sWO+2}, s{sW2+2}")
        A(f"s_mov_b32 s91, 0x20000")
        A(f"s_cselect_b32 s{sT1}, s{sT0}, s{sT1}")
        A(f"s_cselect_b32 s{sT2}, 32, 0x70")
        A(f"s_cselect_b32 s92, {WS_WOF - WS_W2F}, 0")
        A(f"s_add_u32 s92, s92, {WS_W2F}")
        A(f"s_mul_i32 s{sT2}, s{sT2}, s{sT3}")
        A(f"s_add_u32 s{sT2}, s{sT2}, s{sT1}")
        A(f"s_lshl_b32 s{sT2}, s{sT2}, 10")
        A(f"s_add_u32 s{93+slot}, s{sT2}, s92")
        A(f"s_lshl_b32 s{sT1}, s{sT1}, 14")
        A(f"s_lshl_b32 s{sT3}, s{sT3}, 6")
        A(f"s_add_u32 s{sT1}, s{sT1}, s{sT3}")
        A(f"s_mul_i32 s{sT2}, s{sRG}, 3072")
        A(f"s_add_u32 s{sT2}, s{sT2}, {L_PREP + slot*1024}")
        A(f"s_mov_b32 m0, s{sT2}")
        A("s_nop 0")
        A(f"buffer_load_dwordx4 v{vDP}, s[88:91], s{sT1} offen lds")
    prep_params(0, 0); v1.issue("prep")
    prep_params(4, 1); v1.issue("prep")
    A(f"s_cmp_eq_u32 s{sRG}, 0")
    A(f"s_cbranch_scc0 {name}_c1_noprep3")
    prep_params(8, 2)
    A.label(f"{name}_c1_noprep3")
    load_bias(2, v1)
    t = vT
    for a in range(4):
        A(f"v_mov_b32 v{t+a}, 0")
        A(f"v_mov_b32 v{t+4+a}, 0")
    for i in range(128):
        A(f"v_dot2c_f32_bf16 v{t+(i&3)}, s{sONES}, v{vX+i}")
        A(f"v_dot2c_f32_bf16 v{t+4+(i&3)}, v{vX+i}, v{vX+i}")
    A(f"""
    s_nop 3
    v_add_f32 v{t}, v{t}, v{t+1}
    v_add_f32 v{t+2}, v{t+2}, v{t+3}
    v_add_f32 v{t+4}, v{t+4}, v{t+5}
    v_add_f32 v{t+6}, v{t+6}, v{t+7}
    v_add_f32 v{t}, v{t}, v{t+2}
    v_add_f32 v{t+4}, v{t+4}, v{t+6}
    v_mov_b32 v{t+1}, v{t}
    v_mov_b32 v{t+5}, v{t+4}
    s_nop 1
    v_permlane32_swap_b32 v{t}, v{t+1}
    v_permlane32_swap_b32 v{t+4}, v{t+5}
    s_nop 1
    v_add_f32 v{t}, v{t}, v{t+1}
    v_add_f32 v{t+4}, v{t+4}, v{t+5}
    v_mul_f32 v{t}, 0x{f32bits(1.0/512):08x}, v{t}          ; mu
    v_mul_f32 v{t+4}, 0x{f32bits(1.0/512):08x}, v{t+4}      ; E[x^2]
    v_fma_f32 v{t+4}, -v{t}, v{t}, v{t+4}                   ; var
    v_max_f32 v{t+4}, 0, v{t+4}
    v_add_f32 v{t+4}, 0x{f32bits(1e-5):08x}, v{t+4}
    v_rsq_f32 v{vRS}, v{t+4}
    v_sqrt_f32 v{t+5}, v{t+4}                               ; sigma
    v_sub_f32 v{t}, 0, v{t}                                 ; -mu
    v_cvt_pk_bf16_f32 v{vXE}, v{t}, v{t}
    v_and_b32 v{t+1}, 0xffff0000, v{vXE}
    v_sub_f32 v{t+1}, v{t}, v{t+1}
    v_cvt_pk_bf16_f32 v{vXE+1}, v{t+1}, v{t+1}
    v_cvt_pk_bf16_f32 v{t+2}, v{t+5}, v{t+5}
    v_and_b32 v{t+2}, 0xffff0000, v{t+2}
    v_sub_f32 v{t+2}, v{t+5}, v{t+2}
    v_cvt_pk_bf16_f32 v{vXE+2}, v{t+5}, v{t+2}
    v_mov_b32 v{vXE+3}, 0
    v_cmp_gt_u32 vcc, 32, v1
    s_nop 1
    v_cndmask_b32 v{vXE}, 0, v{vXE}, vcc
    v_cndmask_b32 v{vXE+1}, 0, v{vXE+1}, vcc
    v_cndmask_b32 v{vXE+2}, 0, v{vXE+2}, vcc
    s_lshl_b32 s{sT0}, s{sRG}, 10
    s_add_u32 s{sT0}, s{sT0}, {L_EXT}
    v_add_u32 v5, s{sT0}, v2
    ds_write_b128 v5, {vr(vXE,4)}
    v_and_b32 v5, 31, v1
    v_lshlrev_b32 v5, 2, v5
    s_lshl_b32 s{sT0}, s{sRG}, 7
    s_add_u32 s{sT0}, s{sT0}, {L_RSTD}
    v_add_u32 v5, s{sT0}, v5
    ds_write_b32 v5, v{vRS}
    """)
    bar(v1, ["Hb", "Hc"])
    dma_w(('V',), S4, "V", v1)
    set_slot(S1)
    main('N', CS(1, 1))
    A(f"s_waitcnt vmcnt(4)")
    for slot in range(3):
        if slot == 2:
            A(f"s_cmp_eq_u32 s{sRG}, 0")
            A(f"s_cbranch_scc0 {name}_c1_noprep3b")
        A(f"s_mul_i32 s{sT2}, s{sRG}, 3072")
        A(f"s_add_u32 s{sT2}, s{sT2}, {L_PREP + slot*1024}")
        A(f"v_add_u32 v5, s{sT2}, v{vPR}")
        A(f"ds_read_b64_tr_b16 {vr(t,2)}, v5")
        A(f"ds_read_b64_tr_b16 {vr(t+2,2)}, v5 offset:512")
        A("s_waitcnt lgkmcnt(0)")
        A(f"buffer_store_dwordx4 {vr(t,4)}, v2, s[{sWS}:{sWS+3}], s{93+slot} offen")
        A("s_nop 1")
        if slot < 2: v1.issue("st")
    A.label(f"{name}_c1_noprep3b")
    A("s_waitcnt vmcnt(0) lgkmcnt(0)")
    A("s_barrier")
    v1 = VM()
    dma_w(('Q',), S0, "Q", v1)
    dma_w(('K',), S1, "K", v1)
    v1.ops.insert(0, "bias")
    ext('N', CS(1, 1), True, v1)
    set_slot(S4)
    main('V', CS(1, 0))
    epi_h(2, v1)
    bar(v1, ["Q", "K"])
    ext('V', CS(1, 0), False, v1)
    set_slot(S1)
    main('N', CS(1, 1))
    epi_v(v1)
    bar(v1, [])
    ext('N', CS(1, 1), False, v1)
    mfma_wait()
    epi_qk('K', v1)
    A.label(f"{name}_done")
    if stamps:
        stamp(7)
        A(f"""
        s_waitcnt lgkmcnt(0)
        s_lshl_b32 s{sT0}, s2, 3
        s_add_u32 s{sT0}, s{sT0}, s{sW}
        s_lshl_b32 s{sT0}, s{sT0}, 5
        v_mov_b32 v10, s{sT0}
        v_mov_b32 v12, s70
        v_mov_b32 v13, s72
        v_mov_b32 v14, s74
        v_mov_b32 v15, s76
        v_mov_b32 v16, s78
        v_mov_b32 v17, s80
        v_mov_b32 v18, s82
        v_mov_b32 v19, s84
        s_add_u32 s{sT2}, s20, {WS_F2 + 4*MB}
        s_addc_u32 s{sT3}, s21, 0
        v_cmp_eq_u32 vcc, 0, v1
        s_and_saveexec_b64 s[86:87], vcc
        global_store_dwordx4 v10, v[12:15], s[{sT2}:{sT3}]
        global_store_dwordx4 v10, v[16:19], s[{sT2}:{sT3}] offset:16
        """)
    A.label(f"{name}_end")
    A("s_endpgm")
    return A.text(), kernel_desc(name, 256, sgpr=100)
```

```python
from asm import *

def gen_k2(name="attn_kernel", stamps=False):
    A = Asm()
    def stamp(i):
        if stamps:
            A(f"s_memtime s[{40+2*i}:{41+2*i}]")
    vQ, vNEG, vS, vP, vO, vK, vV = 8, 16, (32, 48), 64, 72, 88, (92, 100)
    A.raw(kernel_header(name))
    A(f"""
    s_cmp_ge_u32 s2, 256
    s_cbranch_scc1 {name}_end
    s_load_dwordx2 s[4:5], s[0:1], 72
    v_and_b32 v1, 63, v0
    v_lshrrev_b32 v5, 6, v0
    v_lshlrev_b32 v2, 4, v1
    v_readfirstlane_b32 s12, v5
    s_and_b32 s15, s2, 7
    s_lshr_b32 s16, s2, 3
    s_and_b32 s17, s16, 3
    s_lshl_b32 s13, s15, 2
    s_add_u32 s13, s13, s17
    s_lshr_b32 s17, s16, 2
    s_lshl_b32 s14, s17, 3
    s_add_u32 s14, s14, s12
    s_lshl_b32 s18, s13, 16
    s_mov_b32 s10, {WS_SIZE}
    s_mov_b32 s11, 0x20000
    s_mov_b32 s20, 0xffff
    s_mov_b32 s21, 0xffff
    s_waitcnt lgkmcnt(0)
    s_mov_b32 s8, s4
    s_and_b32 s9, s5, 0xffff
    """)
    stamp(0)
    A(f"""
    s_lshl_b32 s15, s14, 10
    s_add_u32 s15, s15, s18
    buffer_load_dwordx4 {vr(vQ,4)}, v2, s[8:11], s15 offen
    """)
    A(f"""
    s_lshl_b32 s15, s12, 11
    s_add_u32 s16, s15, s18
    s_add_u32 s17, s16, {WS_KF}
    s_mov_b32 m0, s15
    s_add_u32 s19, s16, {WS_VF}
    buffer_load_dwordx4 v2, s[8:11], s17 offen lds
    buffer_load_dwordx4 v2, s[8:11], s17 offen offset:1024 lds
    s_add_u32 s15, s15, 65536
    s_mov_b32 m0, s15
    s_nop 0
    buffer_load_dwordx4 v2, s[8:11], s19 offen lds
    buffer_load_dwordx4 v2, s[8:11], s19 offen offset:1024 lds
    """)
    A(f"""
    s_mul_i32 s15, s12, 6144
    s_add_u32 s15, s15, 16384
    """)
    for base, ldsb in ((WS_KF, 0), (WS_VF, 65536)):
        A(f"""
        s_add_u32 s16, s15, s18
        s_add_u32 s17, s16, {base}
        s_add_u32 s19, s15, {ldsb}
        s_mov_b32 m0, s19
        s_add_u32 s16, s17, 4096
        """)
        for o in (0, 1024, 2048, 3072):
            A(f"buffer_load_dwordx4 v2, s[8:11], s17 offen offset:{o} lds")
        A(f"""
        s_add_u32 s19, s19, 4096
        s_mov_b32 m0, s19
        s_nop 0
        """)
        for o in (0, 1024):
            A(f"buffer_load_dwordx4 v2, s[8:11], s16 offen offset:{o} lds")
    A(f"""
    v_mov_b32 v3, v2
    v_lshrrev_b32 v5, 5, v1
    v_lshlrev_b32 v5, 8, v5
    v_and_b32 v6, 15, v1
    v_lshlrev_b32 v6, 4, v6
    v_add_u32 v4, v5, v6
    v_add_u32 v4, 0x10000, v4
    """)
    for b in range(2):
        for i in range(8):
            A(f"v_mov_b32 v{vV[b]+i}, 0x3f803f80")
    for i in range(16):
        A(f"v_mov_b32 v{vO+i}, 0")
    for i in range(8):
        A(f"v_mov_b32 v{vP+i}, 0")
    A("s_waitcnt vmcnt(12)")
    A("s_barrier")
    stamp(1)
    A(f"""
    ds_read_b128 {vr(vK,4)}, v3
    s_mov_b64 exec, s[20:21]
    ds_read_b128 {vr(vV[0],4)}, v4
    ds_read_b128 {vr(vV[0]+4,4)}, v4 offset:512
    s_mov_b64 exec, -1
    s_waitcnt lgkmcnt(2)
    v_mfma_f32_32x32x16_bf16 {vr(vS[0],16)}, {vr(vK,4)}, {vr(vQ,4)}, 0
    s_nop 15
    s_nop 3
    """)
    S = vS[0]
    A(f"v_max3_f32 v5, v{S}, v{S+1}, v{S+2}")
    for i in range(3, 15, 2):
        A(f"v_max3_f32 v5, v5, v{S+i}, v{S+i+1}")
    A(f"""
    v_max_f32 v5, v5, v{S+15}
    s_nop 0
    v_mov_b32 v6, v5
    s_nop 1
    v_permlane32_swap_b32 v5, v6
    s_nop 1
    v_max_f32 v5, v5, v6
    v_sub_f32 v5, 0, v5
    """)
    for i in range(16):
        A(f"v_mov_b32 v{vNEG+i}, v5")
    A(f"""
    s_nop 1
    v_mfma_f32_32x32x16_bf16 {vr(vS[0],16)}, {vr(vK,4)}, {vr(vQ,4)}, {vr(vNEG,16)}
    ds_read_b128 {vr(vK,4)}, v3 offset:1024
    s_mov_b32 s22, 0
    s_nop 7
    s_nop 7
    """)
    A("s_waitcnt lgkmcnt(0)")
    stamp(2)
    A.label(f"{name}_loop")
    A(f"""
    s_cmp_eq_u32 s22, 3
    s_cbranch_scc0 {name}_nobar
    s_waitcnt vmcnt(0)
    s_barrier
    """)
    A.label(f"{name}_nobar")
    for tl in range(4):
        Sc, Sn = vS[tl & 1], vS[(tl + 1) & 1]
        Vc, Vn = vV[tl & 1], vV[(tl + 1) & 1]
        e = lambda i: f"v_exp_f32 v{Sc+i}, v{Sc+i}"
        c = lambda i: f"v_cvt_pk_bf16_f32 v{vP+i}, v{Sc+2*i}, v{Sc+2*i+1}"
        A(f"""
        s_waitcnt lgkmcnt(2)
        v_mfma_f32_32x32x16_bf16 {vr(Sn,16)}, {vr(vK,4)}, {vr(vQ,4)}, {vr(vNEG,16)}
        ds_read_b128 {vr(vK,4)}, v3 offset:{(tl+2)*1024}
        {e(0)}
        {e(1)}
        v_mfma_f32_32x32x16_bf16 {vr(vO,16)}, {vr(Vn+4,4)}, {vr(vP+4,4)}, {vr(vO,16)}
        s_mov_b64 exec, s[20:21]
        ds_read_b128 {vr(Vn,4)}, v4 offset:{(tl+1)*1024}
        ds_read_b128 {vr(Vn+4,4)}, v4 offset:{(tl+1)*1024+512}
        s_mov_b64 exec, -1
        {e(2)}
        {e(3)}
        {c(0)}
        {e(4)}
        {e(5)}
        {c(1)}
        {e(6)}
        {e(7)}
        {c(2)}
        {e(8)}
        {e(9)}
        {c(3)}
        {e(10)}
        s_waitcnt lgkmcnt(4)
        {e(11)}
        v_mfma_f32_32x32x16_bf16 {vr(vO,16)}, {vr(Vc,4)}, {vr(vP,4)}, {vr(vO,16)}
        {c(4)}
        {e(12)}
        {e(13)}
        {c(5)}
        {e(14)}
        {e(15)}
        {c(6)}
        {c(7)}
        """)
    A(f"""
    v_add_u32 v3, 0x1000, v3
    v_add_u32 v4, 0x1000, v4
    s_add_u32 s22, s22, 1
    s_cmp_lt_u32 s22, 16
    s_cbranch_scc1 {name}_loop
    s_waitcnt lgkmcnt(0)
    v_mfma_f32_32x32x16_bf16 {vr(vO,16)}, {vr(vV[1]+4,4)}, {vr(vP+4,4)}, {vr(vO,16)}
    s_nop 15
    s_nop 3
    s_mov_b32 s23, 0x71800000
    v_cmp_gt_f32 vcc, s23, v{vO+8}
    v_rcp_f32 v5, v{vO+8}
    s_nop 1
    s_cmp_eq_u64 vcc, exec
    s_cbranch_scc0 {name}_fallback
    """)
    A.label(f"{name}_fin")
    stamp(3)
    for i in range(8):
        A(f"v_mul_f32 v{vO+i}, v{vO+i}, v5")
    for i in range(4):
        A(f"v_cvt_pk_bf16_f32 v{vP+i}, v{vO+2*i}, v{vO+2*i+1}")
    A(f"""
    s_lshl_b32 s15, s14, 5
    s_add_u32 s15, s15, s13
    s_lshl_b32 s15, s15, 10
    s_add_u32 s15, s15, {WS_OF}
    buffer_store_dwordx4 {vr(vP,4)}, v2, s[8:11], s15 offen
    """)
    if stamps:
        stamp(4)
        A(f"""
        s_memrealtime s[50:51]
        s_load_dwordx2 s[52:53], s[0:1], 64
        s_waitcnt lgkmcnt(0)
        s_lshl_b32 s54, s2, 3
        s_add_u32 s54, s54, s12
        s_lshl_b32 s54, s54, 5
        v_mov_b32 v10, s54
        v_mov_b32 v12, s40
        v_mov_b32 v13, s42
        v_mov_b32 v14, s44
        v_mov_b32 v15, s46
        v_mov_b32 v16, s48
        v_mov_b32 v17, s50
        s_add_u32 s56, s4, {WS_F2}
        s_addc_u32 s57, s5, 0
        v_cmp_eq_u32 vcc, 0, v1
        s_and_saveexec_b64 s[58:59], vcc
        global_store_dwordx4 v10, v[12:15], s[56:57]
        global_store_dwordx2 v10, v[16:17], s[56:57] offset:16
        """)
    A.label(f"{name}_end")
    A("s_endpgm")
    A.label(f"{name}_fallback")
    S = vS[0]
    Vc = vV[0]
    A(f"""
    v_mov_b32 v3, v2
    v_subrev_u32 v4, 0x10000, v4
    v_mov_b32 v5, 0xff800000
    s_mov_b32 s22, 0
    """)
    A.label(f"{name}_fb1")
    A(f"""
    ds_read_b128 {vr(vK,4)}, v3
    s_waitcnt lgkmcnt(0)
    v_mfma_f32_32x32x16_bf16 {vr(S,16)}, {vr(vK,4)}, {vr(vQ,4)}, 0
    v_add_u32 v3, 0x400, v3
    s_nop 15
    s_nop 3
    """)
    for i in range(0, 16, 2):
        A(f"v_max3_f32 v5, v5, v{S+i}, v{S+i+1}")
    A(f"""
    s_add_u32 s22, s22, 1
    s_cmp_lt_u32 s22, 64
    s_cbranch_scc1 {name}_fb1
    v_mov_b32 v6, v5
    s_nop 1
    v_permlane32_swap_b32 v5, v6
    s_nop 1
    v_max_f32 v5, v5, v6
    v_sub_f32 v5, 0, v5
    """)
    for i in range(16):
        A(f"v_mov_b32 v{vNEG+i}, v5")
    for i in range(16):
        A(f"v_mov_b32 v{vO+i}, 0")
    A(f"""
    v_mov_b32 v3, v2
    s_mov_b32 s22, 0
    """)
    A.label(f"{name}_fb2")
    A(f"""
    ds_read_b128 {vr(vK,4)}, v3
    s_mov_b64 exec, s[20:21]
    ds_read_b128 {vr(Vc,4)}, v4
    ds_read_b128 {vr(Vc+4,4)}, v4 offset:512
    s_mov_b64 exec, -1
    s_waitcnt lgkmcnt(0)
    v_mfma_f32_32x32x16_bf16 {vr(S,16)}, {vr(vK,4)}, {vr(vQ,4)}, {vr(vNEG,16)}
    v_add_u32 v3, 0x400, v3
    v_add_u32 v4, 0x400, v4
    s_nop 15
    s_nop 3
    """)
    for i in range(16):
        A(f"v_exp_f32 v{S+i}, v{S+i}")
    A("s_nop 0")
    for i in range(8):
        A(f"v_cvt_pk_bf16_f32 v{vP+i}, v{S+2*i}, v{S+2*i+1}")
    A(f"""
    s_nop 1
    v_mfma_f32_32x32x16_bf16 {vr(vO,16)}, {vr(Vc,4)}, {vr(vP,4)}, {vr(vO,16)}
    v_mfma_f32_32x32x16_bf16 {vr(vO,16)}, {vr(Vc+4,4)}, {vr(vP+4,4)}, {vr(vO,16)}
    s_add_u32 s22, s22, 1
    s_cmp_lt_u32 s22, 64
    s_cbranch_scc1 {name}_fb2
    s_nop 15
    s_nop 3
    v_rcp_f32 v5, v{vO+8}
    s_nop 0
    s_branch {name}_fin
    """)
    return A.text(), kernel_desc(name, 108, sgpr=64)
```

```python
from asm import *

def gen_k3_v1(name="out_kernel"):
    A = Asm()
    A.raw(kernel_header(name))
    vACC = 16
    vB = (32, 96)
    A(f"""
    s_cmp_ge_u32 s2, 256
    s_cbranch_scc1 {name}_end
    s_load_dwordx2 s[4:5], s[0:1], 72
    s_load_dwordx2 s[6:7], s[0:1], 0
    s_load_dwordx2 s[24:25], s[0:1], 56
    v_and_b32 v1, 63, v0
    v_lshrrev_b32 v5, 6, v0
    v_lshlrev_b32 v2, 4, v1
    v_readfirstlane_b32 s12, v5
    s_and_b32 s15, s2, 7
    s_lshr_b32 s16, s2, 3
    s_and_b32 s17, s16, 3
    s_lshl_b32 s13, s15, 2
    s_add_u32 s13, s13, s17          ; tb
    s_lshr_b32 s14, s16, 2           ; cbk
    s_and_b32 s15, s12, 1
    s_lshl_b32 s13, s13, 1
    s_add_u32 s13, s13, s15          ; tt
    s_lshr_b32 s15, s12, 1
    s_lshl_b32 s14, s14, 1
    s_add_u32 s14, s14, s15          ; ctg
    s_mov_b32 s10, {WS_SIZE}
    s_mov_b32 s11, 0x20000
    s_lshl_b32 s16, s13, 15
    s_add_u32 s16, s16, {WS_OF}
    s_lshl_b32 s17, s14, 15
    s_add_u32 s17, s17, {WS_WOF}
    s_mul_i32 s18, s13, {112*1024}
    s_add_u32 s18, s18, {WS_ACT}
    s_mul_i32 s19, s14, {112*1024}
    s_add_u32 s19, s19, {WS_W2F}
    s_waitcnt lgkmcnt(0)
    s_mov_b32 s8, s4
    s_and_b32 s9, s5, 0xffff
    """)
    for i in range(16):
        A(f"v_mov_b32 v{vACC+i}, 0")
    def loads(buf):
        for half in range(2):
            for j in range(4):
                ks = half * 4 + j
                A(f"buffer_load_dwordx4 {vr(buf+ks*8,4)}, v2, s[8:11], s17 offen offset:{j*1024}")
                A(f"buffer_load_dwordx4 {vr(buf+ks*8+4,4)}, v2, s[8:11], s16 offen offset:{j*1024}")
            A("s_add_u32 s16, s16, 4096")
            A("s_add_u32 s17, s17, 4096")
        A(f"""
        s_add_u32 s20, s20, 1
        s_cmp_eq_u32 s20, 4
        s_cselect_b32 s16, s18, s16
        s_cselect_b32 s17, s19, s17
        """)
    def comp(buf):
        for ks in range(8):
            A(f"v_mfma_f32_32x32x16_bf16 {vr(vACC,16)}, {vr(buf+ks*8,4)}, {vr(buf+ks*8+4,4)}, {vr(vACC,16)}")
    A("s_mov_b32 s20, 0")
    loads(vB[0])
    A("s_mov_b32 s21, 0")
    A.label(f"{name}_loop")
    loads(vB[1])
    A("s_waitcnt vmcnt(16)")
    comp(vB[0])
    loads(vB[0])
    A("s_waitcnt vmcnt(16)")
    comp(vB[1])
    A(f"""
    s_add_u32 s21, s21, 1
    s_cmp_lt_u32 s21, 9
    s_cbranch_scc1 {name}_loop
    s_waitcnt vmcnt(0)
    """)
    A(f"""
    s_mov_b32 s28, s6
    s_and_b32 s29, s7, 0xffff
    s_mov_b32 s30, {2048*512*2}
    s_mov_b32 s31, 0x20000
    s_mov_b32 s32, s24
    s_and_b32 s33, s25, 0xffff
    s_mov_b32 s34, {2048*512*2}
    s_mov_b32 s35, 0x20000
    v_and_b32 v5, 31, v1
    v_lshlrev_b32 v5, 10, v5          ; token*1024
    v_lshrrev_b32 v6, 5, v1
    v_lshlrev_b32 v6, 3, v6           ; h*8 bytes
    v_add_u32 v5, v5, v6
    s_lshl_b32 s15, s13, 15           ; tt*32*1024
    s_lshl_b32 s16, s14, 6
    s_add_u32 s15, s15, s16
    """)
    for g in range(4):
        A(f"buffer_load_dwordx2 {vr(32+2*g,2)}, v5, s[28:31], s15 offen offset:{g*16}")
    A("s_waitcnt vmcnt(0)")
    A("s_nop 7")
    for g in range(4):
        for p in range(2):
            x = 32 + 2*g + p
            A(f"v_lshlrev_b32 v40, 16, v{x}")
            A(f"v_and_b32 v41, 0xffff0000, v{x}")
            A(f"v_add_f32 v40, v40, v{vACC+4*g+2*p}")
            A(f"v_add_f32 v41, v41, v{vACC+4*g+2*p+1}")
            A(f"v_cvt_pk_bf16_f32 v{x}, v40, v41")
    for g in range(4):
        A(f"buffer_store_dwordx2 {vr(32+2*g,2)}, v5, s[32:35], s15 offen offset:{g*16}")
    A.label(f"{name}_end")
    A("s_endpgm")
    return A.text(), kernel_desc(name, 160, sgpr=40)
```

```python
import sys, importlib
from asm import *
HDR = open("parallel_sum__mha_block__dense_activation_mish__prompt.s.ref").read().split("; Override launch")[0]
def build(path, kernels):
    out = HDR
    for (n, t, d, g, b, l) in kernels:
        out += f"; @launch kernel={n} grid=({g},1,1) block=({b},1,1) lds={l}\n"
    out += '.amdgcn_target "amdgcn-amd-amdhsa--gfx950"\n'
    seen = set()
    for (n, t, d, g, b, l) in kernels:
        if n in seen: continue
        seen.add(n)
        out += t
    seen = set()
    for (n, t, d, g, b, l) in kernels:
        if n in seen: continue
        seen.add(n)
        out += d
    open(path, "w").write(out)
if __name__ == "__main__":
    import k1, k2, k3
    st = "stamps" in sys.argv
    ks = []
    t, d = k1.gen_k1(stamps=st); ks.append(("gemm1_kernel", t, d, 256, 512, 163840))
    t, d = k2.gen_k2(stamps=st); ks.append(("attn_kernel", t, d, 256, 512, 131072))
    t, d = k3.gen_k3_v1(); ks.append(("out_kernel", t, d, 256, 256, 0))
    build(sys.argv[1], ks)
```

```python
import sys
from asm import *
from build import build
import k1, k2, k3
def nop(name="nop_kernel"):
    return kernel_header(name) + "    s_endpgm\n", kernel_desc(name, 8, sgpr=16)
n = int(sys.argv[2])
ks = []
t, d = k1.gen_k1(); ks.append(("gemm1_kernel", t, d, 256, 512, 163840))
t, d = k2.gen_k2(); ks.append(("attn_kernel", t, d, 256, 512, 131072))
t, d = k3.gen_k3_v1(); ks.append(("out_kernel", t, d, 256, 256, 0))
t, d = nop()
for i in range(n): ks.append(("nop_kernel", t, d, 256, 64, 0))
build(sys.argv[1], ks)
```

```python
from asm import *

def gen_k2(name="attn_kernel", stamps=False, ffn=True):
    A = Asm()
    def stamp(i):
        if stamps:
            A(f"s_memtime s[{40+2*i}:{41+2*i}]")
    Q = (8, 12); NEG = (16, 32); S = (48, 64); P = (80, 88); O = (96, 112); K = (128, 132); V = (136, 144)
    F = 152; RING = 168
    vFA, vFB, vFC, vFD = 232, 233, 234, 235
    XCH = 0
    A.raw(kernel_header(name))
    A(f"""
    s_cmp_ge_u32 s2, 256
    s_cbranch_scc1 {name}_end
    s_load_dwordx2 s[4:5], s[0:1], 72
    v_and_b32 v1, 63, v0
    v_lshrrev_b32 v5, 6, v0
    v_lshlrev_b32 v2, 4, v1
    v_readfirstlane_b32 s12, v5
    s_and_b32 s15, s2, 7            ; xcd
    s_lshr_b32 s16, s2, 3           ; idx
    s_and_b32 s17, s16, 3
    s_lshl_b32 s13, s15, 2
    s_add_u32 s13, s13, s17
    s_lshr_b32 s17, s16, 2
    s_and_b32 s24, s12, 3
    s_lshr_b32 s25, s12, 2          ; kh
    s_lshl_b32 s14, s17, 3
    s_lshl_b32 s26, s24, 1
    s_add_u32 s14, s14, s26         ; q tile a
    s_lshl_b32 s18, s13, 16         ; head*65536
    s_mov_b32 s10, {WS_SIZE}
    s_mov_b32 s11, 0x20000
    s_mov_b32 s20, 0xffff
    s_mov_b32 s21, 0xffff
    s_mov_b32 s30, {WS_SIZE}
    s_mov_b32 s31, 0x20000
    s_and_b32 s26, s24, 1
    s_lshl_b32 s27, s13, 1
    s_add_u32 s27, s27, s26         ; tt2
    s_lshr_b32 s26, s24, 1
    s_lshl_b32 s33, s17, 1
    s_add_u32 s33, s33, s26         ; ct
    s_mul_i32 s26, s25, {56*1024}
    s_mul_i32 s34, s27, {112*1024}
    s_add_u32 s34, s34, s26
    s_add_u32 s34, s34, {WS_ACT}
    s_mul_i32 s35, s33, {112*1024}
    s_add_u32 s35, s35, s26
    s_add_u32 s35, s35, {WS_W2F}    ; w2 stream
    s_waitcnt lgkmcnt(0)
    s_mov_b32 s8, s4
    s_and_b32 s9, s5, 0xffff
    s_mov_b32 s28, s4
    s_and_b32 s29, s5, 0xffff
    """)
    stamp(0)
    A(f"""
    s_lshl_b32 s15, s14, 10
    s_add_u32 s15, s15, s18
    buffer_load_dwordx4 {vr(Q[0],4)}, v2, s[8:11], s15 offen
    buffer_load_dwordx4 {vr(Q[1],4)}, v2, s[8:11], s15 offen offset:1024
    """)
    A(f"""
    s_lshl_b32 s15, s25, 15
    s_lshl_b32 s16, s24, 11
    s_add_u32 s15, s15, s16
    s_add_u32 s16, s15, s18
    s_add_u32 s17, s16, {WS_KF}
    s_mov_b32 m0, s15
    s_add_u32 s19, s16, {WS_VF}
    buffer_load_dwordx4 v2, s[8:11], s17 offen lds
    buffer_load_dwordx4 v2, s[8:11], s17 offen offset:1024 lds
    s_add_u32 s15, s15, 65536
    s_mov_b32 m0, s15
    s_nop 0
    buffer_load_dwordx4 v2, s[8:11], s19 offen lds
    buffer_load_dwordx4 v2, s[8:11], s19 offen offset:1024 lds
    """)
    A(f"""
    s_lshl_b32 s15, s25, 15
    s_mul_i32 s16, s24, 6144
    s_add_u32 s15, s15, s16
    s_add_u32 s15, s15, 8192
    """)
    for base, ldsb in ((WS_KF, 0), (WS_VF, 65536)):
        A(f"""
        s_add_u32 s16, s15, s18
        s_add_u32 s17, s16, {base}
        s_add_u32 s19, s15, {ldsb}
        s_mov_b32 m0, s19
        s_add_u32 s16, s17, 4096
        """)
        for o in (0, 1024, 2048, 3072):
            A(f"buffer_load_dwordx4 v2, s[8:11], s17 offen offset:{o} lds")
        A(f"""
        s_add_u32 s19, s19, 4096
        s_mov_b32 m0, s19
        s_nop 0
        """)
        for o in (0, 1024):
            A(f"buffer_load_dwordx4 v2, s[8:11], s16 offen offset:{o} lds")
    A(f"""
    s_lshl_b32 s15, s25, 15
    v_add_u32 v3, s15, v2
    v_lshrrev_b32 v5, 5, v1
    v_lshlrev_b32 v5, 8, v5
    v_and_b32 v6, 15, v1
    v_lshlrev_b32 v6, 4, v6
    v_add_u32 v4, v5, v6
    s_add_u32 s15, s15, 0x10000
    v_add_u32 v4, s15, v4             ; V addr
    """)
    for b in range(2):
        for i in range(8):
            A(f"v_mov_b32 v{V[b]+i}, 0x3f803f80")
    for i in range(32):
        A(f"v_mov_b32 v{O[0]+i}, 0")
    for i in range(16):
        A(f"v_mov_b32 v{P[0]+i}, 0")
    for i in range(16):
        A(f"v_mov_b32 v{F+i}, 0")
    if ffn:
        for i in range(64):
            A(f"v_mov_b32 v{RING+i}, 0")
    A("s_waitcnt vmcnt(12) lgkmcnt(0)")
    A("s_barrier")
    stamp(1)
    A(f"""
    ds_read_b128 {vr(K[0],4)}, v3
    ds_read_b128 {vr(K[1],4)}, v3 offset:1024
    s_mov_b64 exec, s[20:21]
    ds_read_b128 {vr(V[0],4)}, v4
    ds_read_b128 {vr(V[0]+4,4)}, v4 offset:512
    s_mov_b64 exec, -1
    s_waitcnt lgkmcnt(3)
    v_mfma_f32_32x32x16_bf16 {vr(S[0],16)}, {vr(K[0],4)}, {vr(Q[0],4)}, 0
    v_mfma_f32_32x32x16_bf16 {vr(S[1],16)}, {vr(K[0],4)}, {vr(Q[1],4)}, 0
    s_nop 15
    s_nop 3
    """)
    def rowmax(Sx, t):
        A(f"v_max3_f32 v{t}, v{Sx}, v{Sx+1}, v{Sx+2}")
        for i in range(3, 15, 2):
            A(f"v_max3_f32 v{t}, v{t}, v{Sx+i}, v{Sx+i+1}")
        A(f"v_max_f32 v{t}, v{t}, v{Sx+15}")
    def crossneg(t, t2, dst):
        A(f"""
        s_nop 0
        v_mov_b32 v{t2}, v{t}
        s_nop 1
        v_permlane32_swap_b32 v{t}, v{t2}
        s_nop 1
        v_max_f32 v{t}, v{t}, v{t2}
        v_sub_f32 v{t}, 0, v{t}
        """)
        for i in range(16):
            A(f"v_mov_b32 v{dst+i}, v{t}")
    rowmax(S[0], 5)
    crossneg(5, 6, NEG[0])
    A("s_nop 7")
    rowmax(S[1], 5)
    A(f"v_mfma_f32_32x32x16_bf16 {vr(S[0],16)}, {vr(K[0],4)}, {vr(Q[0],4)}, {vr(NEG[0],16)}")
    crossneg(5, 6, NEG[1])
    A("s_mov_b32 s22, 0")
    A("s_setprio 3")
    stamp(2)
    A.label(f"{name}_loop")
    A(f"""
    s_cmp_eq_u32 s22, 1
    s_cbranch_scc0 {name}_nobar
    s_waitcnt vmcnt({16 if ffn else 0})
    s_barrier
    """)
    A.label(f"{name}_nobar")
    A(f"""
    s_cmp_eq_u32 s22, 7
    s_cselect_b32 s30, 0, s10
    s_cmp_eq_u32 s22, 3
    s_cbranch_scc0 {name}_p1
    s_setprio 2
    """)
    A.label(f"{name}_p1")
    A(f"""
    s_cmp_eq_u32 s22, 6
    s_cbranch_scc0 {name}_p2
    s_setprio 1
    """)
    A.label(f"{name}_p2")
    A(f"""
    s_cmp_eq_u32 s22, 7
    s_cbranch_scc0 {name}_p3
    s_setprio 0
    """)
    A.label(f"{name}_p3")
    for tl in range(4):
        cur, nxt = tl & 1, (tl + 1) & 1
        Vc, Vn = V[cur], V[nxt]
        e = lambda q, i: f"v_exp_f32 v{S[q]+i}, v{S[q]+i}"
        c = lambda q, i: f"v_cvt_pk_bf16_f32 v{P[q]+i}, v{S[q]+2*i}, v{S[q]+2*i+1}"
        qk = lambda q, kb: f"v_mfma_f32_32x32x16_bf16 {vr(S[q],16)}, {vr(K[kb],4)}, {vr(Q[q],4)}, {vr(NEG[q],16)}"
        pv1 = lambda q: f"v_mfma_f32_32x32x16_bf16 {vr(O[q],16)}, {vr(Vc,4)}, {vr(P[q],4)}, {vr(O[q],16)}"
        pv2 = lambda q, Vb: f"v_mfma_f32_32x32x16_bf16 {vr(O[q],16)}, {vr(Vb+4,4)}, {vr(P[q]+4,4)}, {vr(O[q],16)}"
        dk = f"ds_read_b128 {vr(K[cur],4)}, v3 offset:{(tl+2)*1024}"
        dv = ["s_mov_b64 exec, s[20:21]",
              f"ds_read_b128 {vr(Vn,4)}, v4 offset:{(tl+1)*1024}",
              f"ds_read_b128 {vr(Vn+4,4)}, v4 offset:{(tl+1)*1024+512}",
              "s_mov_b64 exec, -1"]
        def ff(j):
            if not ffn: return []
            r = RING + 8*j
            sa, sw = ("s34", "s35") if j < 4 else ("s36", "s37")
            return ["s_waitcnt vmcnt(14)",
                    f"v_mfma_f32_32x32x16_bf16 {vr(F,16)}, {vr(r,4)}, {vr(r+4,4)}, {vr(F,16)}",
                    f"buffer_load_dwordx4 {vr(r,4)}, v2, s[28:31], {sw} offen offset:{(j%4)*1024}",
                    f"buffer_load_dwordx4 {vr(r+4,4)}, v2, s[28:31], {sa} offen offset:{(j%4)*1024}"]
        seq = []
        if tl == 0 and ffn:
            seq += ["s_add_u32 s36, s34, 4096", "s_add_u32 s37, s35, 4096"]
        seq += ["s_waitcnt lgkmcnt(0)", qk(1, cur), e(0,0), e(0,1), e(0,2), e(0,3), c(0,0), pv2(1, Vn), e(0,4), dk] + dv + [e(0,5), c(0,1), e(0,6), e(0,7), c(0,2)]
        seq += ff(2*tl)
        seq += [e(0,8), e(0,9), c(0,3), e(0,10), e(0,11), c(0,4), pv1(0), e(0,12), e(0,13), c(0,5), e(0,14), e(0,15), c(0,6), c(0,7)]
        seq += [qk(0, nxt), e(1,0), e(1,1), e(1,2), e(1,3), c(1,0), pv2(0, Vc), e(1,4), e(1,5), c(1,1), e(1,6), e(1,7), c(1,2)]
        seq += ff(2*tl+1)
        seq += [e(1,8), e(1,9), c(1,3), e(1,10), e(1,11), pv1(1), c(1,4), e(1,12), e(1,13), c(1,5), e(1,14), e(1,15), c(1,6), c(1,7)]
        for x in seq: A(x)
    A(f"""
    v_add_u32 v3, 0x1000, v3
    v_add_u32 v4, 0x1000, v4
    s_add_u32 s34, s34, 8192
    s_add_u32 s35, s35, 8192
    s_add_u32 s22, s22, 1
    s_cmp_lt_u32 s22, 8
    s_cbranch_scc1 {name}_loop
    s_waitcnt lgkmcnt(0)
    v_mfma_f32_32x32x16_bf16 {vr(O[1],16)}, {vr(V[1]+4,4)}, {vr(P[1]+4,4)}, {vr(O[1],16)}
    """)
    A("s_setprio 0")
    A(f"""
    s_nop 15
    s_nop 3
    s_mov_b32 s23, 0x71800000
    v_cmp_gt_f32 vcc, s23, v{O[0]+8}
    v_cmp_gt_f32 s[38:39], s23, v{O[1]+8}
    s_nop 1
    s_and_b64 vcc, vcc, s[38:39]
    s_cmp_eq_u64 vcc, exec
    s_cbranch_scc0 {name}_fallback
    """)
    A.label(f"{name}_fin")
    stamp(3)
    A("s_barrier")
    A(f"""
    s_lshl_b32 s15, s12, 12
    v_add_u32 v5, s15, v2
    s_xor_b32 s16, s12, 4
    s_lshl_b32 s16, s16, 12
    v_add_u32 v6, s16, v2
    s_cmp_eq_u32 s25, 0
    s_cbranch_scc0 {name}_x1
    """)
    def send(q, fh):
        A(f"ds_write_b128 v5, {vr(O[q],4)}")
        A(f"ds_write_b128 v5, {vr(O[q]+4,4)} offset:1024")
        A(f"v_mov_b32 v{O[q]+9}, v{NEG[q]}")
        A(f"ds_write_b128 v5, {vr(F+8*fh,4)} offset:2048")
        A(f"ds_write_b128 v5, {vr(F+8*fh+4,4)} offset:3072")
        A(f"v_lshrrev_b32 v7, 1, v2")
        A(f"s_lshl_b32 s15, s12, 9")
        A(f"s_add_u32 s15, s15, 32768")
        A(f"v_add_u32 v7, s15, v7")
        A(f"ds_write_b64 v7, {vr(O[q]+8,2)}")
    def recv(q, fh, qi):
        T = S[0]
        A("s_waitcnt lgkmcnt(0)")
        A("s_barrier")
        A(f"ds_read_b128 {vr(T,4)}, v6")
        A(f"ds_read_b128 {vr(T+4,4)}, v6 offset:1024")
        A(f"ds_read_b128 {vr(T+8,4)}, v6 offset:2048")
        A(f"ds_read_b128 {vr(T+12,4)}, v6 offset:3072")
        A(f"v_lshrrev_b32 v7, 1, v2")
        A(f"s_xor_b32 s15, s12, 4")
        A(f"s_lshl_b32 s15, s15, 9")
        A(f"s_add_u32 s15, s15, 32768")
        A(f"v_add_u32 v7, s15, v7")
        A(f"ds_read_b64 {vr(T+16,2)}, v7")
        A("s_waitcnt lgkmcnt(0)")
        A(f"v_sub_f32 v5, v{NEG[q]}, v{T+17}")
        A(f"v_max_f32 v6, 0, v5")
        A(f"v_sub_f32 v7, 0, v6")
        A(f"v_exp_f32 v7, v7")
        A(f"v_sub_f32 v5, v5, v6")
        A(f"v_exp_f32 v5, v5")
        A("s_nop 0")
        A(f"v_mul_f32 v6, v{O[q]+8}, v7")
        A(f"v_fma_f32 v6, v{T+16}, v5, v6")
        A(f"v_rcp_f32 v6, v6")
        A("s_nop 0")
        A(f"v_mul_f32 v7, v7, v6")
        A(f"v_mul_f32 v5, v5, v6")
        for i in range(8):
            A(f"v_mul_f32 v{O[q]+i}, v{O[q]+i}, v7")
            A(f"v_fma_f32 v{O[q]+i}, v{T+i}, v5, v{O[q]+i}")
        for i in range(4):
            A(f"v_cvt_pk_bf16_f32 v{P[0]+i}, v{O[q]+2*i}, v{O[q]+2*i+1}")
        A(f"s_add_u32 s15, s14, {qi}")
        A(f"s_lshl_b32 s15, s15, 5")
        A(f"s_add_u32 s15, s15, s13")
        A(f"s_lshl_b32 s15, s15, 10")
        A(f"s_add_u32 s15, s15, {WS_OF}")
        A(f"buffer_store_dwordx4 {vr(P[0],4)}, v2, s[8:11], s15 offen")
        if ffn:
            for i in range(8):
                A(f"v_add_f32 v{F+8*fh+i}, v{F+8*fh+i}, v{T+8+i}")
            A(f"s_lshl_b32 s15, s27, 4")
            A(f"s_add_u32 s15, s15, s33")
            A(f"s_lshl_b32 s15, s15, 12")
            A(f"s_add_u32 s15, s15, {WS_F2 + fh*2048}")
            A(f"buffer_store_dwordx4 {vr(F+8*fh,4)}, v2, s[8:11], s15 offen")
            A(f"buffer_store_dwordx4 {vr(F+8*fh+4,4)}, v2, s[8:11], s15 offen offset:1024")
    send(1, 1); recv(0, 0, 0)
    A(f"s_branch {name}_st")
    A.label(f"{name}_x1")
    send(0, 0); recv(1, 1, 1)
    A.label(f"{name}_st")
    if stamps:
        stamp(4)
        A(f"""
        s_waitcnt lgkmcnt(0)
        s_lshl_b32 s54, s2, 3
        s_add_u32 s54, s54, s12
        s_lshl_b32 s54, s54, 5
        v_mov_b32 v10, s54
        v_mov_b32 v12, s40
        v_mov_b32 v13, s42
        v_mov_b32 v14, s44
        v_mov_b32 v15, s46
        v_mov_b32 v16, s48
        v_mov_b32 v17, s48
        s_add_u32 s56, s4, {WS_F2 + 5*MB}
        s_addc_u32 s57, s5, 0
        v_cmp_eq_u32 vcc, 0, v1
        s_and_saveexec_b64 s[58:59], vcc
        global_store_dwordx4 v10, v[12:15], s[56:57]
        global_store_dwordx2 v10, v[16:17], s[56:57] offset:16
        """)
    A.label(f"{name}_end")
    A("s_endpgm")
    A.label(f"{name}_fallback")
    A(f"""
    v_subrev_u32 v3, 0x8000, v3
    v_subrev_u32 v4, 0x8000, v4
    v_mov_b32 v236, v3
    v_mov_b32 v237, v4
    """)
    for q in range(2):
        Sx = S[q]; Vc = V[0]
        A(f"""
        v_mov_b32 v3, v236
        v_mov_b32 v5, 0xff800000
        s_mov_b32 s22, 0
        """)
        A.label(f"{name}_fb1_{q}")
        A(f"""
        ds_read_b128 {vr(K[0],4)}, v3
        s_waitcnt lgkmcnt(0)
        v_mfma_f32_32x32x16_bf16 {vr(Sx,16)}, {vr(K[0],4)}, {vr(Q[q],4)}, 0
        v_add_u32 v3, 0x400, v3
        s_nop 15
        s_nop 3
        """)
        for i in range(0, 16, 2):
            A(f"v_max3_f32 v5, v5, v{Sx+i}, v{Sx+i+1}")
        A(f"""
        s_add_u32 s22, s22, 1
        s_cmp_lt_u32 s22, 32
        s_cbranch_scc1 {name}_fb1_{q}
        """)
        crossneg(5, 6, NEG[q])
        for i in range(16):
            A(f"v_mov_b32 v{O[q]+i}, 0")
        A(f"""
        v_mov_b32 v3, v236
        v_mov_b32 v4, v237
        s_mov_b32 s22, 0
        """)
        A.label(f"{name}_fb2_{q}")
        A(f"""
        ds_read_b128 {vr(K[0],4)}, v3
        s_mov_b64 exec, s[20:21]
        ds_read_b128 {vr(Vc,4)}, v4
        ds_read_b128 {vr(Vc+4,4)}, v4 offset:512
        s_mov_b64 exec, -1
        s_waitcnt lgkmcnt(0)
        v_mfma_f32_32x32x16_bf16 {vr(Sx,16)}, {vr(K[0],4)}, {vr(Q[q],4)}, {vr(NEG[q],16)}
        v_add_u32 v3, 0x400, v3
        v_add_u32 v4, 0x400, v4
        s_nop 15
        s_nop 3
        """)
        for i in range(16):
            A(f"v_exp_f32 v{Sx+i}, v{Sx+i}")
        A("s_nop 0")
        for i in range(8):
            A(f"v_cvt_pk_bf16_f32 v{P[q]+i}, v{Sx+2*i}, v{Sx+2*i+1}")
        A(f"""
        s_nop 1
        v_mfma_f32_32x32x16_bf16 {vr(O[q],16)}, {vr(Vc,4)}, {vr(P[q],4)}, {vr(O[q],16)}
        v_mfma_f32_32x32x16_bf16 {vr(O[q],16)}, {vr(Vc+4,4)}, {vr(P[q]+4,4)}, {vr(O[q],16)}
        s_add_u32 s22, s22, 1
        s_cmp_lt_u32 s22, 32
        s_cbranch_scc1 {name}_fb2_{q}
        s_nop 15
        s_nop 3
        """)
    A(f"s_branch {name}_fin")
    return A.text(), kernel_desc(name, 240, sgpr=64)

def gen_k3(name="out_kernel", stamps=False):
    A = Asm()
    A.raw(kernel_header(name))
    vACC = 16; vXR = 8
    vB = 32
    A(f"""
    s_cmp_ge_u32 s2, 256
    s_cbranch_scc1 {name}_end
    s_load_dwordx2 s[4:5], s[0:1], 72
    s_load_dwordx2 s[6:7], s[0:1], 0
    s_load_dwordx2 s[24:25], s[0:1], 56
    v_and_b32 v1, 63, v0
    v_lshrrev_b32 v5, 6, v0
    v_lshlrev_b32 v2, 4, v1
    v_readfirstlane_b32 s12, v5
    s_and_b32 s15, s2, 7
    s_lshr_b32 s16, s2, 3
    s_and_b32 s17, s16, 3
    s_lshl_b32 s13, s15, 2
    s_add_u32 s13, s13, s17          ; tb
    s_lshr_b32 s14, s16, 2           ; cbk
    s_and_b32 s15, s12, 1
    s_lshl_b32 s13, s13, 1
    s_add_u32 s13, s13, s15          ; tt
    s_lshr_b32 s15, s12, 1
    s_lshl_b32 s14, s14, 1
    s_add_u32 s14, s14, s15          ; ct
    s_mov_b32 s10, {WS_SIZE}
    s_mov_b32 s11, 0x20000
    s_lshl_b32 s16, s13, 15
    s_add_u32 s16, s16, {WS_OF}
    s_lshl_b32 s17, s14, 15
    s_add_u32 s17, s17, {WS_WOF}
    s_lshl_b32 s18, s13, 4
    s_add_u32 s18, s18, s14
    s_lshl_b32 s18, s18, 12
    s_add_u32 s18, s18, {WS_F2}
    v_and_b32 v5, 31, v1
    v_lshlrev_b32 v5, 10, v5          ; token*1024
    v_lshrrev_b32 v6, 5, v1
    v_lshlrev_b32 v6, 3, v6           ; h*8 bytes
    v_add_u32 v5, v5, v6
    s_lshl_b32 s15, s13, 15           ; tt*32*1024
    s_lshl_b32 s19, s14, 6
    s_add_u32 s15, s15, s19
    s_mov_b32 s30, {2048*512*2}
    s_mov_b32 s31, 0x20000
    s_mov_b32 s34, {2048*512*2}
    s_mov_b32 s35, 0x20000
    s_waitcnt lgkmcnt(0)
    s_mov_b32 s8, s4
    s_and_b32 s9, s5, 0xffff
    s_mov_b32 s28, s6
    s_and_b32 s29, s7, 0xffff
    s_mov_b32 s32, s24
    s_and_b32 s33, s25, 0xffff
    """)
    for g in range(4):
        A(f"buffer_load_dwordx4 {vr(vACC+4*g,4)}, v2, s[8:11], s18 offen offset:{g*1024}")
    for ks in range(32):
        if ks and ks % 4 == 0:
            A("s_add_u32 s16, s16, 4096")
            A("s_add_u32 s17, s17, 4096")
        A(f"buffer_load_dwordx4 {ar(4*ks,4)}, v2, s[8:11], s17 offen offset:{(ks%4)*1024}")
        A(f"buffer_load_dwordx4 {vr(vB+4*ks,4)}, v2, s[8:11], s16 offen offset:{(ks%4)*1024}")
    for g in range(4):
        A(f"buffer_load_dwordx2 {vr(vXR+2*g,2)}, v5, s[28:31], s15 offen offset:{g*16}")
    for ks in range(32):
        n = min(63, 2*(31-ks) + 4)
        A(f"s_waitcnt vmcnt({n})")
        A(f"v_mfma_f32_32x32x16_bf16 {vr(vACC,16)}, {ar(4*ks,4)}, {vr(vB+4*ks,4)}, {vr(vACC,16)}")
    A("s_waitcnt vmcnt(0)")
    A("s_nop 15")
    for g in range(4):
        for p in range(2):
            x = vXR + 2*g + p
            A(f"v_lshlrev_b32 v6, 16, v{x}")
            A(f"v_and_b32 v7, 0xffff0000, v{x}")
            A(f"v_add_f32 v6, v6, v{vACC+4*g+2*p}")
            A(f"v_add_f32 v7, v7, v{vACC+4*g+2*p+1}")
            A(f"v_cvt_pk_bf16_f32 v{x}, v6, v7")
    for g in range(4):
        A(f"buffer_store_dwordx2 {vr(vXR+2*g,2)}, v5, s[32:35], s15 offen offset:{g*16}")
    A.label(f"{name}_end")
    A("s_endpgm")
    return A.text(), kernel_desc(name, 160, sgpr=40, accum=160, agpr=128)
```

```python
import sys
from asm import *
from build import build
import k1, k2b
st = "stamps" in sys.argv
ks = []
t, d = k1.gen_k1(stamps=st); ks.append(("gemm1_kernel", t, d, 256, 512, 163840))
t, d = k2b.gen_k2(stamps=st, ffn=("noffn" not in sys.argv)); ks.append(("attn_kernel", t, d, 256, 512, 131072+64))
t, d = k2b.gen_k3(); ks.append(("out_kernel", t, d, 256, 256, 0))
build(sys.argv[1], ks)
```

```python
class Asm:
    def __init__(self):
        self.lines = []
        self._lab = 0
    def __call__(self, s):
        for l in s.split("\n"):
            l = l.strip()
            if l:
                self.lines.append("    " + l)
    def label(self, l):
        self.lines.append(l + ":")
    def newlabel(self, p="L"):
        self._lab += 1
        return f"{p}_{self._lab}"
    def comment(self, s):
        self.lines.append("    ; " + s)
    def raw(self, s):
        self.lines.append(s)
    def text(self):
        return "\n".join(self.lines) + "\n"

def vr(a, n):
    return f"v[{a}:{a+n-1}]" if n > 1 else f"v{a}"
def ar(a, n):
    return f"a[{a}:{a+n-1}]" if n > 1 else f"a{a}"
def sr(a, n):
    return f"s[{a}:{a+n-1}]" if n > 1 else f"s{a}"

def kernel_header(name):
    return f""".text
.globl {name}
.p2align 8
.type {name},@function
{name}:
"""
def kernel_desc(name, vgpr, sgpr=96, accum=None, agpr=0):
    if accum is None:
        accum = (vgpr + 3) // 4 * 4
    nfv = accum + agpr if agpr else vgpr
    return f""".section .rodata,"a"
.p2align 6
.amdhsa_kernel {name}
  .amdhsa_next_free_vgpr {nfv}
  .amdhsa_next_free_sgpr {sgpr}
  .amdhsa_accum_offset {accum}
  .amdhsa_group_segment_fixed_size 0
  .amdhsa_kernarg_size 80
  .amdhsa_user_sgpr_count 2
  .amdhsa_user_sgpr_kernarg_segment_ptr 1
  .amdhsa_system_sgpr_workgroup_id_x 1
  .amdhsa_float_denorm_mode_32 3
.end_amdhsa_kernel
"""

MB = 1 << 20
WS_QF = 0
WS_KF = 2 * MB
WS_VF = 4 * MB
WS_OF = 6 * MB
WS_ACT = 8 * MB
WS_W2F = 16 * MB
WS_WOF = 18 * MB
WS_F2 = 20 * MB
WS_CNT = 30 * MB
WS_TK = 30 * MB + 65536
WS_SIZE = 268435456

def interleave(main, fill, ratio=None):
    out = []
    n, m = len(main), len(fill)
    j = 0
    for i, x in enumerate(main):
        out.append(x)
        tgt = (i + 1) * m // n
        while j < tgt:
            out.append(fill[j]); j += 1
    out += fill[j:]
    return out


WS_RT = 40 * MB
def rt_begin(A, on):
    if on:
        A("s_memrealtime s[96:97]")
def rt_end(A, on, kidx, ws_lo_reg):
    if not on: return
    A(f"""
    s_waitcnt vmcnt(0) lgkmcnt(0)
    s_memrealtime s[98:99]
    s_waitcnt lgkmcnt(0)
    s_mov_b64 exec, 1
    v_lshrrev_b32 v10, 6, v0
    v_lshlrev_b32 v10, 3, v10
    s_lshl_b32 s94, s2, 7
    v_add_u32 v10, s94, v10
    v_mov_b32 v12, s96
    v_mov_b32 v13, s98
    s_add_u32 s94, s{ws_lo_reg}, {WS_RT + kidx*65536}
    s_addc_u32 s95, s{ws_lo_reg+1}, 0
    global_store_dwordx2 v10, v[12:13], s[94:95]
    """)
```

```python
from asm import *
import os
SF = os.environ.get("SF", "")

LOG2E = 1.4426950408889634
import struct
def f32bits(x):
    return struct.unpack("<I", struct.pack("<f", x))[0]

class VM:
    def __init__(self): self.ops = []
    def issue(self, tag): self.ops.append(tag)
    def count_after(self, tag):
        idx = max(i for i, t in enumerate(self.ops) if t == tag)
        return len(self.ops) - 1 - idx
    def copy(self):
        v = VM(); v.ops = list(self.ops); return v

S0, S1, S2, S4 = 0, 32768, 65536, 131072
SCR = 98304
L_EXT = SCR
L_RSTD = SCR + 4096
L_CS = SCR + 5120
L_PREP = SCR + 10240

def gen_k1(name="gemm1_kernel", stamps=False, rt=False):
    A = Asm()
    vX, vACC, vST, vW = 128, 96, 112, 80
    vWA = 76
    vWB = 72
    vXE = 68
    vWE = 64
    vRS, vCS, vBIAS = 63, 62, 61
    vDW_Q, vDW_1, vDP = 60, 59, 58
    vVO = 57
    vPR = 56
    vT = 8
    sX, sWQ, sW1, sWS, sB1, sW2, sWO = 24, 28, 32, 36, 40, 44, 48
    sW, sRG, sCG, sRB, sCB, sHB, sTT = 52, 53, 54, 55, 56, 57, 58
    sT0, sT1, sT2, sT3 = 60, 61, 62, 63
    sONES = 64
    sEVEN = 65
    def stamp(i):
        if stamps:
            A(f"s_memtime s[{70+2*i}:{71+2*i}]")
    A.raw(kernel_header(name))
    rt_begin(A, rt)
    A(f"""
    s_cmp_ge_u32 s2, 256
    s_cbranch_scc1 {name}_end
    s_load_dwordx4 s[4:7], s[0:1], 0
    s_load_dwordx2 s[18:19], s[0:1], 16
    s_load_dwordx4 s[12:15], s[0:1], 32
    s_load_dwordx2 s[16:17], s[0:1], 48
    s_load_dwordx2 s[20:21], s[0:1], 72
    v_and_b32 v1, 63, v0
    v_lshrrev_b32 v5, 6, v0
    v_lshlrev_b32 v2, 4, v1
    v_readfirstlane_b32 s{sW}, v5
    s_and_b32 s{sT0}, s2, 7
    s_lshr_b32 s{sT1}, s2, 3
    s_and_b32 s{sT2}, s{sT0}, 1
    s_lshl_b32 s{sT2}, s{sT2}, 3
    s_and_b32 s{sT3}, s{sT1}, 7
    s_add_u32 s{sRB}, s{sT2}, s{sT3}
    s_lshr_b32 s{sT2}, s{sT0}, 1
    s_lshl_b32 s{sT2}, s{sT2}, 2
    s_lshr_b32 s{sT3}, s{sT1}, 3
    s_add_u32 s{sCB}, s{sT2}, s{sT3}
    s_and_b32 s{sRG}, s{sW}, 3
    s_lshr_b32 s{sCG}, s{sW}, 2
    s_lshr_b32 s{sT0}, s{sCB}, 1
    s_mul_i32 s{sHB}, s{sT0}, 7
    s_and_b32 s{sT0}, s{sCB}, 1
    s_xor_b32 s{sEVEN}, s{sT0}, 1
    s_lshl_b32 s{sT0}, s{sT0}, 2
    s_add_u32 s{sHB}, s{sHB}, s{sT0}
    s_lshl_b32 s{sTT}, s{sRB}, 2
    s_add_u32 s{sTT}, s{sTT}, s{sRG}
    s_mov_b32 s{sONES}, 0x3f803f80
    """)
    for srd, nb in ((sX, 2048*1024), (sWQ, 512*3072), (sW1, 512*3584), (sWS, WS_SIZE), (sB1, 1792*2), (sW2, 1792*1024), (sWO, 512*1024)):
        A(f"s_mov_b32 s{srd+2}, {nb}")
        A(f"s_mov_b32 s{srd+3}, 0x20000")
    A("s_waitcnt lgkmcnt(0)")
    for srd, p in ((sX, 4), (sWQ, 6), (sW1, 12), (sWS, 20), (sB1, 14), (sW2, 16), (sWO, 18)):
        A(f"s_mov_b32 s{srd}, s{p}")
        A(f"s_and_b32 s{srd+1}, s{p+1}, 0xffff")
    stamp(0)
    vm = VM()
    A(f"""
    s_lshl_b32 s{sT0}, s{sW}, 14
    s_lshl_b32 s{sT1}, s{sRB}, 17         ; rb*128*1024
    s_add_u32 s{sT1}, s{sT1}, s{sT0}
    """)
    for i in range(16):
        if i % 4 == 0:
            A(f"s_add_u32 s{sT2}, s{sT0}, {i*1024}")
            A(f"s_mov_b32 m0, s{sT2}")
            A(f"s_add_u32 s{sT3}, s{sT1}, {i*1024}")
        A(f"v_xor_b32 v{vT+(i&3)}, {i*16}, v2")
        A(f"buffer_load_dwordx4 v{vT+(i&3)}, s[{sX}:{sX+3}], s{sT3} offen offset:{(i%4)*1024} lds")
        vm.issue("x")
    A(f"""
    v_lshrrev_b32 v5, 2, v1
    v_and_b32 v6, 3, v1
    v_lshlrev_b32 v6, 4, v6
    v_mul_u32_u24 v{vDW_Q}, 3072, v5
    v_add_u32 v{vDW_Q}, v{vDW_Q}, v6
    v_mul_u32_u24 v{vDW_1}, 3584, v5
    v_add_u32 v{vDW_1}, v{vDW_1}, v6
    v_lshlrev_b32 v{vDP}, 10, v5
    v_add_u32 v{vDP}, v{vDP}, v6
    """)
    def dma_w(kind, slot, tag, vm):
        if kind[0] == 'H':
            ld, srd, vo = 3584, sW1, vDW_1
            A(f"s_add_u32 s{sT0}, s{sHB}, {kind[1]}")
            A(f"s_lshl_b32 s{sT0}, s{sT0}, 6")
        else:
            ld, srd, vo = 3072, sWQ, vDW_Q
            A(f"s_lshl_b32 s{sT0}, s{sCB}, 6")
            off = {'Q': 0, 'K': 1024, 'V': 2048}[kind[0]]
            if off: A(f"s_add_u32 s{sT0}, s{sT0}, {off}")
        A(f"s_mul_i32 s{sT1}, s{sW}, {64*ld}")
        A(f"s_add_u32 s{sT0}, s{sT0}, s{sT1}")
        A(f"s_lshl_b32 s{sT1}, s{sW}, 12")
        A(f"s_add_u32 s{sT1}, s{sT1}, {slot}")
        for j in range(4):
            A(f"s_mov_b32 m0, s{sT1}")
            if j < 3:
                A(f"s_add_u32 s{sT1}, s{sT1}, 1024")
            else:
                A("s_nop 0")
            A(f"buffer_load_dwordx4 v{vo}, s[{srd}:{srd+3}], s{sT0} offen lds")
            vm.issue(tag)
            if j < 3: A(f"s_add_u32 s{sT0}, s{sT0}, {16*ld}")
    dma_w(('H', 0), S4, "Ha", vm)
    A(f"""
    v_lshrrev_b32 v5, 5, v1
    v_lshlrev_b32 v5, 9, v5
    v_bfe_u32 v6, v1, 2, 2
    v_lshlrev_b32 v6, 6, v6
    v_add_u32 v5, v5, v6
    v_bfe_u32 v6, v1, 4, 1
    v_lshlrev_b32 v6, 5, v6
    v_add_u32 v5, v5, v6
    v_and_b32 v6, 3, v1
    v_lshlrev_b32 v6, 3, v6
    v_add_u32 v5, v5, v6
    v_lshrrev_b32 v6, 5, v1
    v_lshlrev_b32 v6, 8, v6
    v_sub_u32 v{vPR}, v5, v6
    """)
    for b in range(4):
        A(f"s_add_u32 s{sT0}, s{sRG}, {b}")
        A(f"s_and_b32 s{sT0}, s{sT0}, 3")
        A(f"s_lshl_b32 s{sT1}, s{sT0}, 13")
        A(f"v_add_u32 v{vWB+b}, s{sT1}, v5")
        A(f"s_lshl_b32 s{66+b}, s{sT0}, 8")
    A(f"""
    v_and_b32 v5, 31, v1
    v_lshlrev_b32 v6, 10, v5
    s_lshl_b32 s{sT0}, s{sRG}, 15
    v_add_u32 v6, s{sT0}, v6
    v_and_b32 v7, 15, v1
    v_lshlrev_b32 v7, 4, v7
    v_lshrrev_b32 v5, 5, v1
    v_lshlrev_b32 v5, 4, v5
    v_xor_b32 v7, v7, v5
    v_add_u32 v6, v6, v7
    v_bfe_u32 v5, v1, 4, 1
    v_lshlrev_b32 v5, 16, v5
    v_lshrrev_b32 v7, 5, v1
    v_lshlrev_b32 v7, 8, v7
    v_add_u32 v5, v5, v7
    v_and_b32 v7, 15, v1
    v_lshlrev_b32 v7, 4, v7
    v_add_u32 v{vVO}, v5, v7
    """)
    for b in range(4):
        A(f"v_add_u32 v{vT+b}, s{66+b}, v6")
    A("s_waitcnt vmcnt(0)")
    A("s_barrier")
    stamp(1)
    for i in range(32):
        b = i >> 3
        A(f"v_xor_b32 v{vT+4+(i&7)}, {(i&7)*32}, v{vT+b}")
        A(f"ds_read_b128 {vr(vX+4*i,4)}, v{vT+4+(i&7)}")
    A("s_waitcnt lgkmcnt(0)")
    A("s_barrier")
    stamp(2)
    vm = VM()
    dma_w(('H', 1), S0, "Hb", vm)
    dma_w(('H', 2), S1, "Hc", vm)
    dma_w(('H', 3), S2, "Hd", vm)
    A(f"s_cmp_eq_u32 s{sCG}, 0")
    A(f"s_cbranch_scc0 {name}_cg1")

    def set_slot(slot):
        for b in range(4):
            A(f"v_add_u32 v{vWA+b}, {slot}, v{vWB+b}")
    def main(orient, csbuf):
        def rd(i):
            b = i >> 3
            w = vW + 4*(i & 3)
            A(f"ds_read_b64_tr_b16 {vr(w,2)}, v{vWA+b} offset:{(i&7)*1024}")
            A(f"ds_read_b64_tr_b16 {vr(w+2,2)}, v{vWA+b} offset:{(i&7)*1024+256}")
        for i in range(3): rd(i)
        A(f"v_mov_b32 v{vCS}, 0")
        for i in range(32):
            if i + 3 < 32:
                rd(i + 3)
                A("s_waitcnt lgkmcnt(6)")
            else:
                A(f"s_waitcnt lgkmcnt({2*(31-i)})")
            w = vW + 4*(i & 3)
            c = "0" if i == 0 else vr(vACC, 16)
            if orient == 'N':
                A(f"v_mfma_f32_32x32x16_bf16 {vr(vACC,16)}, {vr(w,4)}, {vr(vX+4*i,4)}, {c}")
            else:
                A(f"v_mfma_f32_32x32x16_bf16 {vr(vACC,16)}, {vr(vX+4*i,4)}, {vr(w,4)}, {c}")
            if i < 8:
                for j in range(4):
                    A(f"v_dot2c_f32_bf16 v{vCS}, s{sONES}, v{w+j}")
            if i == 8:
                A(f"s_lshl_b32 s{sT0}, s{sRG}, 8")
                A(f"s_add_u32 s{sT0}, s{sT0}, {csbuf}")
                A(f"v_lshlrev_b32 v5, 2, v1")
                A(f"v_add_u32 v5, s{sT0}, v5")
                A(f"ds_write_b32 v5, v{vCS}")
                A("s_waitcnt lgkmcnt(0)")
    def load_bias(j, vm):
        A(f"s_add_u32 s{sT0}, s{sHB}, {j}")
        A(f"s_lshl_b32 s{sT0}, s{sT0}, 6")
        A(f"v_and_b32 v5, 31, v1")
        A(f"v_lshlrev_b32 v5, 1, v5")
        A(f"buffer_load_ushort v{vBIAS}, v5, s[{sB1}:{sB1+3}], s{sT0} offen")
        vm.issue("bias")
    def ext(orient, csbuf, bias, vm):
        t = vT
        A(f"v_and_b32 v5, 31, v1")
        A(f"v_lshlrev_b32 v5, 2, v5")
        A(f"v_add_u32 v5, {csbuf}, v5")
        for j in range(4):
            A(f"ds_read2_b32 {vr(t+2*j,2)}, v5 offset0:{j*64} offset1:{j*64+32}")
        A("s_waitcnt lgkmcnt(0)")
        A(f"v_add_f32 v{t}, v{t}, v{t+1}")
        A(f"v_add_f32 v{t+2}, v{t+2}, v{t+3}")
        A(f"v_add_f32 v{t+4}, v{t+4}, v{t+5}")
        A(f"v_add_f32 v{t+6}, v{t+6}, v{t+7}")
        A(f"v_add_f32 v{t}, v{t}, v{t+2}")
        A(f"v_add_f32 v{t+4}, v{t+4}, v{t+6}")
        A(f"v_add_f32 v{t}, v{t}, v{t+4}")
        A(f"v_cvt_pk_bf16_f32 v{t+1}, v{t}, v{t}")
        A(f"v_and_b32 v{t+1}, 0xffff0000, v{t+1}")
        A(f"v_sub_f32 v{t+1}, v{t}, v{t+1}")
        A(f"v_cvt_pk_bf16_f32 v{vWE}, v{t}, v{t+1}")
        A(f"v_mov_b32 v{vWE+1}, v{vWE}")
        if bias:
            A(f"s_waitcnt vmcnt({vm.count_after('bias')})")
            A(f"v_lshl_or_b32 v{vWE+2}, v{vBIAS}, 16, v{vBIAS}")
        else:
            A(f"v_mov_b32 v{vWE+2}, 0")
        A(f"v_mov_b32 v{vWE+3}, 0")
        A("s_nop 1")
        if orient == 'N':
            A(f"v_mfma_f32_32x32x16_bf16 {vr(vST,16)}, {vr(vWE,4)}, {vr(vXE,4)}, {vr(vACC,16)}")
        else:
            A(f"v_mfma_f32_32x32x16_bf16 {vr(vST,16)}, {vr(vXE,4)}, {vr(vWE,4)}, {vr(vACC,16)}")
    def mfma_wait():
        A("s_nop 15")
        A("s_nop 3")
    def epi_h(j, vm):
        t = vT
        A(f"v_mul_f32 v{t}, 0x{f32bits(LOG2E):08x}, v{vRS}")
        A(f"v_mul_f32 v{t+1}, -2.0, v{vRS}")
        for r in range(16):
            a = vST + r
            e = t + 2 + (r & 3) * 3
            A(f"v_mul_f32 v{e}, v{a}, v{t}")
            A(f"v_exp_f32 v{e}, v{e}")
            A("s_nop 0")
            A(f"v_add_f32 v{e+1}, 2.0, v{e}")
            A(f"v_fma_f32 v{e+1}, v{e}, v{e+1}, 2.0")
            A(f"v_rcp_f32 v{e+1}, v{e+1}")
            A("s_nop 0")
            A(f"v_fma_f32 v{e+1}, v{e+1}, v{t+1}, v{vRS}")
            A(f"v_mul_f32 v{a}, v{a}, v{e+1}")
        o = t + 16
        for i in range(8):
            A(f"v_cvt_pk_bf16_f32 v{o+i}, v{vST+2*i}, v{vST+2*i+1}")
        A(f"s_mul_i32 s{sT0}, s{sTT}, 112")
        A(f"s_add_u32 s{sT1}, s{sHB}, {j}")
        A(f"s_lshl_b32 s{sT1}, s{sT1}, 1")
        A(f"s_add_u32 s{sT0}, s{sT0}, s{sT1}")
        A(f"s_lshl_b32 s{sT0}, s{sT0}, 10")
        A(f"s_add_u32 s{sT0}, s{sT0}, {WS_ACT}")
        A(f"buffer_store_dwordx4 {vr(o,4)}, v2, s[{sWS}:{sWS+3}], s{sT0} offen{SF}")
        A(f"buffer_store_dwordx4 {vr(o+4,4)}, v2, s[{sWS}:{sWS+3}], s{sT0} offen offset:1024{SF}")
        vm.issue("st"); vm.issue("st")
        A("s_nop 1")
    def epi_qk(kind, vm):
        t = vT
        if kind == 'Q':
            A(f"v_mul_f32 v{t}, 0x{f32bits(0.25*LOG2E):08x}, v{vRS}")
        else:
            A(f"v_mov_b32 v{t}, v{vRS}")
        for r in range(16):
            A(f"v_mul_f32 v{vST+r}, v{vST+r}, v{t}")
        o = t + 16
        for i in range(8):
            A(f"v_cvt_pk_bf16_f32 v{o+i}, v{vST+2*i}, v{vST+2*i+1}")
        base = WS_QF if kind == 'Q' else WS_KF
        A(f"s_lshl_b32 s{sT0}, s{sCB}, 17")
        A(f"s_lshl_b32 s{sT1}, s{sTT}, 10")
        A(f"s_add_u32 s{sT0}, s{sT0}, s{sT1}")
        A(f"s_add_u32 s{sT0}, s{sT0}, {base}")
        A(f"s_add_u32 s{sT1}, s{sT0}, 65536")
        A(f"buffer_store_dwordx4 {vr(o,4)}, v2, s[{sWS}:{sWS+3}], s{sT0} offen{SF}")
        A(f"buffer_store_dwordx4 {vr(o+4,4)}, v2, s[{sWS}:{sWS+3}], s{sT1} offen{SF}")
        vm.issue("st"); vm.issue("st")
        A("s_nop 1")
    def epi_v(vm):
        t = vT
        A(f"v_lshrrev_b32 v5, 5, v1")
        A(f"v_lshlrev_b32 v5, 4, v5")
        A(f"s_lshl_b32 s{sT0}, s{sRG}, 7")
        A(f"s_add_u32 s{sT0}, s{sT0}, {L_RSTD}")
        A(f"v_add_u32 v5, s{sT0}, v5")
        for g in range(4):
            A(f"ds_read_b128 {vr(t+4*g,4)}, v5 offset:{g*32}")
        A("s_waitcnt lgkmcnt(0)")
        for r in range(16):
            A(f"v_mul_f32 v{vST+r}, v{vST+r}, v{t+r}")
        o = t + 16
        for i in range(8):
            A(f"v_cvt_pk_bf16_f32 v{o+i}, v{vST+2*i}, v{vST+2*i+1}")
        A(f"s_lshl_b32 s{sT0}, s{sCB}, 17")
        A(f"s_lshl_b32 s{sT1}, s{sTT}, 10")
        A(f"s_add_u32 s{sT0}, s{sT0}, s{sT1}")
        A(f"s_add_u32 s{sT0}, s{sT0}, {WS_VF}")
        A(f"buffer_store_dwordx4 {vr(o,4)}, v{vVO}, s[{sWS}:{sWS+3}], s{sT0} offen{SF}")
        A(f"buffer_store_dwordx4 {vr(o+4,4)}, v{vVO}, s[{sWS}:{sWS+3}], s{sT0} offen offset:512{SF}")
        vm.issue("st"); vm.issue("st")
        A("s_nop 1")
    def bar(vm, tags):
        n = min(vm.count_after(t) for t in tags) if tags else None
        if n is not None:
            A(f"s_waitcnt vmcnt({n}) lgkmcnt(0)")
        else:
            A("s_waitcnt lgkmcnt(0)")
        A("s_barrier")
    CS = lambda cg, p: L_CS + (cg*2 + (p & 1)) * 1024

    v0 = vm.copy()
    load_bias(0, v0)
    set_slot(S4)
    main('N', CS(0, 0))
    bar(v0, ["Hb", "Hc"])
    stamp(3)
    dma_w(('V',), S4, "V", v0)
    A(f"s_lshl_b32 s{sT0}, s{sRG}, 10")
    A(f"s_add_u32 s{sT0}, s{sT0}, {L_EXT}")
    A(f"v_add_u32 v5, s{sT0}, v2")
    A(f"ds_read_b128 {vr(vXE,4)}, v5")
    A(f"v_and_b32 v5, 31, v1")
    A(f"v_lshlrev_b32 v5, 2, v5")
    A(f"s_lshl_b32 s{sT0}, s{sRG}, 7")
    A(f"s_add_u32 s{sT0}, s{sT0}, {L_RSTD}")
    A(f"v_add_u32 v5, s{sT0}, v5")
    A(f"ds_read_b32 v{vRS}, v5")
    ext('N', CS(0, 0), True, v0)
    load_bias(1, v0)
    set_slot(S0)
    mfma_wait()
    epi_h(0, v0)
    main('N', CS(0, 1))
    bar(v0, ["Hd", "V"])
    stamp(4)
    dma_w(('Q',), S0, "Q", v0)
    dma_w(('K',), S1, "K", v0)
    ext('N', CS(0, 1), True, v0)
    load_bias(3, v0)
    set_slot(S2)
    mfma_wait()
    epi_h(1, v0)
    A(f"s_cmp_eq_u32 s{sEVEN}, 0")
    A(f"s_cbranch_scc1 {name}_c0_skip1")
    main('N', CS(0, 0))
    A.label(f"{name}_c0_skip1")
    bar(v0, ["Q", "K"])
    stamp(5)
    A(f"s_cmp_eq_u32 s{sEVEN}, 0")
    A(f"s_cbranch_scc1 {name}_c0_skip2")
    ve = v0.copy()
    ext('N', CS(0, 0), True, ve)
    mfma_wait()
    epi_h(3, ve)
    A.label(f"{name}_c0_skip2")
    set_slot(S0)
    main('N', CS(0, 1))
    bar(v0, [])
    stamp(6)
    ext('N', CS(0, 1), False, v0)
    mfma_wait()
    epi_qk('Q', v0)
    A(f"s_branch {name}_done")

    A.label(f"{name}_cg1")
    v1 = vm.copy()
    def prep_params(jadd, slot):
        A(f"s_and_b32 s{sT0}, s2, 15")
        A(f"s_mul_i32 s{sT0}, s{sT0}, 9")
        A(f"s_add_u32 s{sT0}, s{sT0}, s{sRG}")
        if jadd: A(f"s_add_u32 s{sT0}, s{sT0}, {jadd}")
        A(f"s_lshr_b32 s{sT3}, s2, 4")
        A(f"s_sub_u32 s{sT1}, s{sT0}, 32")
        A(f"s_cmp_lt_u32 s{sT0}, 32")
        A(f"s_cselect_b32 s88, s{sWO}, s{sW2}")
        A(f"s_cselect_b32 s89, s{sWO+1}, s{sW2+1}")
        A(f"s_cselect_b32 s90, s{sWO+2}, s{sW2+2}")
        A(f"s_mov_b32 s91, 0x20000")
        A(f"s_cselect_b32 s{sT1}, s{sT0}, s{sT1}")
        A(f"s_cselect_b32 s{sT2}, 32, 0x70")
        A(f"s_cselect_b32 s92, {WS_WOF - WS_W2F}, 0")
        A(f"s_add_u32 s92, s92, {WS_W2F}")
        A(f"s_mul_i32 s{sT2}, s{sT2}, s{sT3}")
        A(f"s_add_u32 s{sT2}, s{sT2}, s{sT1}")
        A(f"s_lshl_b32 s{sT2}, s{sT2}, 10")
        A(f"s_add_u32 s{93+slot}, s{sT2}, s92")
        A(f"s_lshl_b32 s{sT1}, s{sT1}, 14")
        A(f"s_lshl_b32 s{sT3}, s{sT3}, 6")
        A(f"s_add_u32 s{sT1}, s{sT1}, s{sT3}")
        A(f"s_mul_i32 s{sT2}, s{sRG}, 3072")
        A(f"s_add_u32 s{sT2}, s{sT2}, {L_PREP + slot*1024}")
        A(f"s_mov_b32 m0, s{sT2}")
        A("s_nop 0")
        A(f"buffer_load_dwordx4 v{vDP}, s[88:91], s{sT1} offen lds")
    prep_params(0, 0); v1.issue("prep")
    prep_params(4, 1); v1.issue("prep")
    A(f"s_cmp_eq_u32 s{sRG}, 0")
    A(f"s_cbranch_scc0 {name}_c1_noprep3")
    prep_params(8, 2)
    A.label(f"{name}_c1_noprep3")
    load_bias(2, v1)
    t = vT
    for a in range(4):
        A(f"v_mov_b32 v{t+a}, 0")
        A(f"v_mov_b32 v{t+4+a}, 0")
    for i in range(128):
        A(f"v_dot2c_f32_bf16 v{t+(i&3)}, s{sONES}, v{vX+i}")
        A(f"v_dot2c_f32_bf16 v{t+4+(i&3)}, v{vX+i}, v{vX+i}")
    A(f"""
    s_nop 3
    v_add_f32 v{t}, v{t}, v{t+1}
    v_add_f32 v{t+2}, v{t+2}, v{t+3}
    v_add_f32 v{t+4}, v{t+4}, v{t+5}
    v_add_f32 v{t+6}, v{t+6}, v{t+7}
    v_add_f32 v{t}, v{t}, v{t+2}
    v_add_f32 v{t+4}, v{t+4}, v{t+6}
    v_mov_b32 v{t+1}, v{t}
    v_mov_b32 v{t+5}, v{t+4}
    s_nop 1
    v_permlane32_swap_b32 v{t}, v{t+1}
    v_permlane32_swap_b32 v{t+4}, v{t+5}
    s_nop 1
    v_add_f32 v{t}, v{t}, v{t+1}
    v_add_f32 v{t+4}, v{t+4}, v{t+5}
    v_mul_f32 v{t}, 0x{f32bits(1.0/512):08x}, v{t}          ; mu
    v_mul_f32 v{t+4}, 0x{f32bits(1.0/512):08x}, v{t+4}      ; E[x^2]
    v_fma_f32 v{t+4}, -v{t}, v{t}, v{t+4}                   ; var
    v_max_f32 v{t+4}, 0, v{t+4}
    v_add_f32 v{t+4}, 0x{f32bits(1e-5):08x}, v{t+4}
    v_rsq_f32 v{vRS}, v{t+4}
    v_sqrt_f32 v{t+5}, v{t+4}                               ; sigma
    v_sub_f32 v{t}, 0, v{t}                                 ; -mu
    v_cvt_pk_bf16_f32 v{vXE}, v{t}, v{t}
    v_and_b32 v{t+1}, 0xffff0000, v{vXE}
    v_sub_f32 v{t+1}, v{t}, v{t+1}
    v_cvt_pk_bf16_f32 v{vXE+1}, v{t+1}, v{t+1}
    v_cvt_pk_bf16_f32 v{t+2}, v{t+5}, v{t+5}
    v_and_b32 v{t+2}, 0xffff0000, v{t+2}
    v_sub_f32 v{t+2}, v{t+5}, v{t+2}
    v_cvt_pk_bf16_f32 v{vXE+2}, v{t+5}, v{t+2}
    v_mov_b32 v{vXE+3}, 0
    v_cmp_gt_u32 vcc, 32, v1
    s_nop 1
    v_cndmask_b32 v{vXE}, 0, v{vXE}, vcc
    v_cndmask_b32 v{vXE+1}, 0, v{vXE+1}, vcc
    v_cndmask_b32 v{vXE+2}, 0, v{vXE+2}, vcc
    s_lshl_b32 s{sT0}, s{sRG}, 10
    s_add_u32 s{sT0}, s{sT0}, {L_EXT}
    v_add_u32 v5, s{sT0}, v2
    ds_write_b128 v5, {vr(vXE,4)}
    v_and_b32 v5, 31, v1
    v_lshlrev_b32 v5, 2, v5
    s_lshl_b32 s{sT0}, s{sRG}, 7
    s_add_u32 s{sT0}, s{sT0}, {L_RSTD}
    v_add_u32 v5, s{sT0}, v5
    ds_write_b32 v5, v{vRS}
    """)
    bar(v1, ["Hb", "Hc"])
    dma_w(('V',), S4, "V", v1)
    set_slot(S1)
    main('N', CS(1, 1))
    A(f"s_waitcnt vmcnt(4)")
    for slot in range(3):
        if slot == 2:
            A(f"s_cmp_eq_u32 s{sRG}, 0")
            A(f"s_cbranch_scc0 {name}_c1_noprep3b")
        A(f"s_mul_i32 s{sT2}, s{sRG}, 3072")
        A(f"s_add_u32 s{sT2}, s{sT2}, {L_PREP + slot*1024}")
        A(f"v_add_u32 v5, s{sT2}, v{vPR}")
        A(f"ds_read_b64_tr_b16 {vr(t,2)}, v5")
        A(f"ds_read_b64_tr_b16 {vr(t+2,2)}, v5 offset:512")
        A("s_waitcnt lgkmcnt(0)")
        A(f"buffer_store_dwordx4 {vr(t,4)}, v2, s[{sWS}:{sWS+3}], s{93+slot} offen{SF}")
        A("s_nop 1")
        if slot < 2: v1.issue("st")
    A.label(f"{name}_c1_noprep3b")
    A("s_waitcnt vmcnt(0) lgkmcnt(0)")
    A("s_barrier")
    v1 = VM()
    dma_w(('Q',), S0, "Q", v1)
    dma_w(('K',), S1, "K", v1)
    v1.ops.insert(0, "bias")
    ext('N', CS(1, 1), True, v1)
    set_slot(S4)
    main('V', CS(1, 0))
    epi_h(2, v1)
    bar(v1, ["Q", "K"])
    ext('V', CS(1, 0), False, v1)
    set_slot(S1)
    main('N', CS(1, 1))
    epi_v(v1)
    bar(v1, [])
    ext('N', CS(1, 1), False, v1)
    mfma_wait()
    epi_qk('K', v1)
    A.label(f"{name}_done")
    if stamps:
        stamp(7)
        A(f"""
        s_waitcnt lgkmcnt(0)
        s_lshl_b32 s{sT0}, s2, 3
        s_add_u32 s{sT0}, s{sT0}, s{sW}
        s_lshl_b32 s{sT0}, s{sT0}, 5
        v_mov_b32 v10, s{sT0}
        v_mov_b32 v12, s70
        v_mov_b32 v13, s72
        v_mov_b32 v14, s74
        v_mov_b32 v15, s76
        v_mov_b32 v16, s78
        v_mov_b32 v17, s80
        v_mov_b32 v18, s82
        v_mov_b32 v19, s84
        s_add_u32 s{sT2}, s20, {WS_F2 + 4*MB}
        s_addc_u32 s{sT3}, s21, 0
        v_cmp_eq_u32 vcc, 0, v1
        s_and_saveexec_b64 s[86:87], vcc
        global_store_dwordx4 v10, v[12:15], s[{sT2}:{sT3}]
        global_store_dwordx4 v10, v[16:19], s[{sT2}:{sT3}] offset:16
        """)
    rt_end(A, rt, 0, 20)
    A.label(f"{name}_end")
    A("s_endpgm")
    return A.text(), kernel_desc(name, 256, sgpr=100)
```

```python
from asm import *
import os
SF = os.environ.get("SF", "")

def gen_k2(name="attn_kernel", stamps=False, ffn=True, rt=False, exp=""):
    A = Asm()
    def stamp(i):
        if stamps:
            A(f"s_memtime s[{40+2*i}:{41+2*i}]")
    Q = (8, 12); NEG = (16, 32); S = (48, 64); P = (80, 88); O = (96, 112); K = (128, 132); V = (136, 144)
    F = 152; RING = 168
    vFA, vFB, vFC, vFD = 232, 233, 234, 235
    XCH = 0
    A.raw(kernel_header(name))
    rt_begin(A, rt)
    A(f"""
    s_cmp_ge_u32 s2, 256
    s_cbranch_scc1 {name}_end
    s_load_dwordx2 s[4:5], s[0:1], 72
    v_and_b32 v1, 63, v0
    v_lshrrev_b32 v5, 6, v0
    v_lshlrev_b32 v2, 4, v1
    v_readfirstlane_b32 s12, v5
    s_and_b32 s15, s2, 7            ; xcd
    s_lshr_b32 s16, s2, 3           ; idx
    s_and_b32 s17, s16, 3
    s_lshl_b32 s13, s15, 2
    s_add_u32 s13, s13, s17
    s_lshr_b32 s17, s16, 2
    s_and_b32 s24, s12, 3
    s_lshr_b32 s25, s12, 2          ; kh
    s_lshl_b32 s14, s17, 3
    s_lshl_b32 s26, s24, 1
    s_add_u32 s14, s14, s26         ; q tile a
    s_lshl_b32 s18, s13, 16         ; head*65536
    s_mov_b32 s10, {WS_SIZE}
    s_mov_b32 s11, 0x20000
    s_mov_b32 s20, 0xffff
    s_mov_b32 s21, 0xffff
    s_mov_b32 s30, {WS_SIZE}
    s_mov_b32 s31, 0x20000
    s_and_b32 s26, s24, 1
    s_lshl_b32 s27, s13, 1
    s_add_u32 s27, s27, s26         ; tt2
    s_lshr_b32 s26, s24, 1
    s_lshl_b32 s33, s17, 1
    s_add_u32 s33, s33, s26         ; ct
    s_mul_i32 s26, s25, {56*1024}
    s_mul_i32 s34, s27, {112*1024}
    s_add_u32 s34, s34, s26
    s_add_u32 s34, s34, {WS_ACT}
    s_mul_i32 s35, s33, {112*1024}
    s_add_u32 s35, s35, s26
    s_add_u32 s35, s35, {WS_W2F}    ; w2 stream
    s_waitcnt lgkmcnt(0)
    s_mov_b32 s8, s4
    s_and_b32 s9, s5, 0xffff
    s_mov_b32 s28, s4
    s_and_b32 s29, s5, 0xffff
    """)
    stamp(0)
    A(f"""
    s_lshl_b32 s15, s14, 10
    s_add_u32 s15, s15, s18
    buffer_load_dwordx4 {vr(Q[0],4)}, v2, s[8:11], s15 offen
    buffer_load_dwordx4 {vr(Q[1],4)}, v2, s[8:11], s15 offen offset:1024
    """)
    A(f"""
    s_lshl_b32 s15, s25, 15
    s_lshl_b32 s16, s24, 11
    s_add_u32 s15, s15, s16
    s_add_u32 s16, s15, s18
    s_add_u32 s17, s16, {WS_KF}
    s_mov_b32 m0, s15
    s_add_u32 s19, s16, {WS_VF}
    buffer_load_dwordx4 v2, s[8:11], s17 offen lds
    buffer_load_dwordx4 v2, s[8:11], s17 offen offset:1024 lds
    s_add_u32 s15, s15, 65536
    s_mov_b32 m0, s15
    s_nop 0
    buffer_load_dwordx4 v2, s[8:11], s19 offen lds
    buffer_load_dwordx4 v2, s[8:11], s19 offen offset:1024 lds
    """)
    A(f"""
    s_lshl_b32 s15, s25, 15
    s_mul_i32 s16, s24, 6144
    s_add_u32 s15, s15, s16
    s_add_u32 s15, s15, 8192
    """)
    for base, ldsb in ((WS_KF, 0), (WS_VF, 65536)):
        A(f"""
        s_add_u32 s16, s15, s18
        s_add_u32 s17, s16, {base}
        s_add_u32 s19, s15, {ldsb}
        s_mov_b32 m0, s19
        s_add_u32 s16, s17, 4096
        """)
        for o in (0, 1024, 2048, 3072):
            A(f"buffer_load_dwordx4 v2, s[8:11], s17 offen offset:{o} lds")
        A(f"""
        s_add_u32 s19, s19, 4096
        s_mov_b32 m0, s19
        s_nop 0
        """)
        for o in (0, 1024):
            A(f"buffer_load_dwordx4 v2, s[8:11], s16 offen offset:{o} lds")
    A(f"""
    s_lshl_b32 s15, s25, 15
    v_add_u32 v3, s15, v2
    v_lshrrev_b32 v5, 5, v1
    v_lshlrev_b32 v5, 8, v5
    v_and_b32 v6, 15, v1
    v_lshlrev_b32 v6, 4, v6
    v_add_u32 v4, v5, v6
    s_add_u32 s15, s15, 0x10000
    v_add_u32 v4, s15, v4             ; V addr
    """)
    for b in range(2):
        for i in range(8):
            A(f"v_mov_b32 v{V[b]+i}, 0x3f803f80")
    for i in range(32):
        A(f"v_mov_b32 v{O[0]+i}, 0")
    for i in range(16):
        A(f"v_mov_b32 v{P[0]+i}, 0")
    for i in range(16):
        A(f"v_mov_b32 v{F+i}, 0")
    if ffn:
        for i in range(64):
            A(f"v_mov_b32 v{RING+i}, 0")
    A("s_waitcnt vmcnt(12) lgkmcnt(0)")
    A("s_barrier")
    stamp(1)
    A(f"""
    ds_read_b128 {vr(K[0],4)}, v3
    ds_read_b128 {vr(K[1],4)}, v3 offset:1024
    s_mov_b64 exec, s[20:21]
    ds_read_b128 {vr(V[0],4)}, v4
    ds_read_b128 {vr(V[0]+4,4)}, v4 offset:512
    s_mov_b64 exec, -1
    s_waitcnt lgkmcnt(3)
    v_mfma_f32_32x32x16_bf16 {vr(S[0],16)}, {vr(K[0],4)}, {vr(Q[0],4)}, 0
    v_mfma_f32_32x32x16_bf16 {vr(S[1],16)}, {vr(K[0],4)}, {vr(Q[1],4)}, 0
    s_nop 15
    s_nop 3
    """)
    def rowmax(Sx, t):
        A(f"v_max3_f32 v{t}, v{Sx}, v{Sx+1}, v{Sx+2}")
        for i in range(3, 15, 2):
            A(f"v_max3_f32 v{t}, v{t}, v{Sx+i}, v{Sx+i+1}")
        A(f"v_max_f32 v{t}, v{t}, v{Sx+15}")
    def crossneg(t, t2, dst):
        A(f"""
        s_nop 0
        v_mov_b32 v{t2}, v{t}
        s_nop 1
        v_permlane32_swap_b32 v{t}, v{t2}
        s_nop 1
        v_max_f32 v{t}, v{t}, v{t2}
        v_sub_f32 v{t}, 0, v{t}
        """)
        for i in range(16):
            A(f"v_mov_b32 v{dst+i}, v{t}")
    rowmax(S[0], 5)
    crossneg(5, 6, NEG[0])
    A("s_nop 7")
    rowmax(S[1], 5)
    A(f"v_mfma_f32_32x32x16_bf16 {vr(S[0],16)}, {vr(K[0],4)}, {vr(Q[0],4)}, {vr(NEG[0],16)}")
    crossneg(5, 6, NEG[1])
    A("s_mov_b32 s22, 0")
    A("s_setprio 3")
    stamp(2)
    A.label(f"{name}_loop")
    A(f"""
    s_cmp_eq_u32 s22, 1
    s_cbranch_scc0 {name}_nobar
    s_waitcnt vmcnt({16 if ffn else 0})
    s_barrier
    """)
    A.label(f"{name}_nobar")
    A(f"""
    s_cmp_eq_u32 s22, 7
    s_cselect_b32 s30, 0, s10
    s_cmp_eq_u32 s22, 3
    s_cbranch_scc0 {name}_p1
    s_setprio 2
    """)
    A.label(f"{name}_p1")
    A(f"""
    s_cmp_eq_u32 s22, 6
    s_cbranch_scc0 {name}_p2
    s_setprio 1
    """)
    A.label(f"{name}_p2")
    A(f"""
    s_cmp_eq_u32 s22, 7
    s_cbranch_scc0 {name}_p3
    s_setprio 0
    """)
    A.label(f"{name}_p3")
    for tl in range(4):
        cur, nxt = tl & 1, (tl + 1) & 1
        Vc, Vn = V[cur], V[nxt]
        e = lambda q, i: f"v_exp_f32 v{S[q]+i}, v{S[q]+i}"
        c = lambda q, i: f"v_cvt_pk_bf16_f32 v{P[q]+i}, v{S[q]+2*i}, v{S[q]+2*i+1}"
        qk = lambda q, kb: f"v_mfma_f32_32x32x16_bf16 {vr(S[q],16)}, {vr(K[kb],4)}, {vr(Q[q],4)}, {vr(NEG[q],16)}"
        pv1 = lambda q: f"v_mfma_f32_32x32x16_bf16 {vr(O[q],16)}, {vr(Vc,4)}, {vr(P[q],4)}, {vr(O[q],16)}"
        pv2 = lambda q, Vb: f"v_mfma_f32_32x32x16_bf16 {vr(O[q],16)}, {vr(Vb+4,4)}, {vr(P[q]+4,4)}, {vr(O[q],16)}"
        dk = f"ds_read_b128 {vr(K[cur],4)}, v3 offset:{(tl+2)*1024}"
        dv = ["s_mov_b64 exec, s[20:21]",
              f"ds_read_b128 {vr(Vn,4)}, v4 offset:{(tl+1)*1024}",
              f"ds_read_b128 {vr(Vn+4,4)}, v4 offset:{(tl+1)*1024+512}",
              "s_mov_b64 exec, -1"]
        def ff(j):
            if not ffn: return []
            r = RING + 8*j
            sa, sw = ("s34", "s35") if j < 4 else ("s36", "s37")
            L = ["s_waitcnt vmcnt(14)",
                    f"v_mfma_f32_32x32x16_bf16 {vr(F,16)}, {vr(r,4)}, {vr(r+4,4)}, {vr(F,16)}",
                    f"buffer_load_dwordx4 {vr(r,4)}, v2, s[28:31], {sw} offen offset:{(j%4)*1024}",
                    f"buffer_load_dwordx4 {vr(r+4,4)}, v2, s[28:31], {sa} offen offset:{(j%4)*1024}"]
            if exp == "mfmaonly": L = L[1:2]
            if exp == "loadsonly": L = L[2:]
            if exp == "nowait": L = L[1:]
            if exp == "nomfma": L = [L[0]] + L[2:]
            return L
        seq = []
        if tl == 0 and ffn:
            seq += ["s_add_u32 s36, s34, 4096", "s_add_u32 s37, s35, 4096"]
        seq += ["s_waitcnt lgkmcnt(0)", qk(1, cur), e(0,0), e(0,1), e(0,2), e(0,3), c(0,0), pv2(1, Vn), e(0,4), dk] + dv + [e(0,5), c(0,1), e(0,6), e(0,7), c(0,2)]
        seq += ff(2*tl)
        seq += [e(0,8), e(0,9), c(0,3), e(0,10), e(0,11), c(0,4), pv1(0), e(0,12), e(0,13), c(0,5), e(0,14), e(0,15), c(0,6), c(0,7)]
        seq += [qk(0, nxt), e(1,0), e(1,1), e(1,2), e(1,3), c(1,0), pv2(0, Vc), e(1,4), e(1,5), c(1,1), e(1,6), e(1,7), c(1,2)]
        seq += ff(2*tl+1)
        seq += [e(1,8), e(1,9), c(1,3), e(1,10), e(1,11), pv1(1), c(1,4), e(1,12), e(1,13), c(1,5), e(1,14), e(1,15), c(1,6), c(1,7)]
        for x in seq: A(x)
    A(f"""
    v_add_u32 v3, 0x1000, v3
    v_add_u32 v4, 0x1000, v4
    s_add_u32 s34, s34, 8192
    s_add_u32 s35, s35, 8192
    s_add_u32 s22, s22, 1
    s_cmp_lt_u32 s22, 8
    s_cbranch_scc1 {name}_loop
    s_waitcnt lgkmcnt(0)
    v_mfma_f32_32x32x16_bf16 {vr(O[1],16)}, {vr(V[1]+4,4)}, {vr(P[1]+4,4)}, {vr(O[1],16)}
    """)
    A("s_setprio 0")
    A(f"""
    s_nop 15
    s_nop 3
    s_mov_b32 s23, 0x71800000
    v_cmp_gt_f32 vcc, s23, v{O[0]+8}
    v_cmp_gt_f32 s[38:39], s23, v{O[1]+8}
    s_nop 1
    s_and_b64 vcc, vcc, s[38:39]
    s_cmp_eq_u64 vcc, exec
    s_cbranch_scc0 {name}_fallback
    """)
    A.label(f"{name}_fin")
    stamp(3)
    A("s_barrier")
    A(f"""
    s_lshl_b32 s15, s12, 12
    v_add_u32 v5, s15, v2
    s_xor_b32 s16, s12, 4
    s_lshl_b32 s16, s16, 12
    v_add_u32 v6, s16, v2
    s_cmp_eq_u32 s25, 0
    s_cbranch_scc0 {name}_x1
    """)
    def send(q, fh):
        A(f"ds_write_b128 v5, {vr(O[q],4)}")
        A(f"ds_write_b128 v5, {vr(O[q]+4,4)} offset:1024")
        A(f"v_mov_b32 v{O[q]+9}, v{NEG[q]}")
        A(f"ds_write_b128 v5, {vr(F+8*fh,4)} offset:2048")
        A(f"ds_write_b128 v5, {vr(F+8*fh+4,4)} offset:3072")
        A(f"v_lshrrev_b32 v7, 1, v2")
        A(f"s_lshl_b32 s15, s12, 9")
        A(f"s_add_u32 s15, s15, 32768")
        A(f"v_add_u32 v7, s15, v7")
        A(f"ds_write_b64 v7, {vr(O[q]+8,2)}")
    def recv(q, fh, qi):
        T = S[0]
        A("s_waitcnt lgkmcnt(0)")
        A("s_barrier")
        A(f"ds_read_b128 {vr(T,4)}, v6")
        A(f"ds_read_b128 {vr(T+4,4)}, v6 offset:1024")
        A(f"ds_read_b128 {vr(T+8,4)}, v6 offset:2048")
        A(f"ds_read_b128 {vr(T+12,4)}, v6 offset:3072")
        A(f"v_lshrrev_b32 v7, 1, v2")
        A(f"s_xor_b32 s15, s12, 4")
        A(f"s_lshl_b32 s15, s15, 9")
        A(f"s_add_u32 s15, s15, 32768")
        A(f"v_add_u32 v7, s15, v7")
        A(f"ds_read_b64 {vr(T+16,2)}, v7")
        A("s_waitcnt lgkmcnt(0)")
        A(f"v_sub_f32 v5, v{NEG[q]}, v{T+17}")
        A(f"v_max_f32 v6, 0, v5")
        A(f"v_sub_f32 v7, 0, v6")
        A(f"v_exp_f32 v7, v7")
        A(f"v_sub_f32 v5, v5, v6")
        A(f"v_exp_f32 v5, v5")
        A("s_nop 0")
        A(f"v_mul_f32 v6, v{O[q]+8}, v7")
        A(f"v_fma_f32 v6, v{T+16}, v5, v6")
        A(f"v_rcp_f32 v6, v6")
        A("s_nop 0")
        A(f"v_mul_f32 v7, v7, v6")
        A(f"v_mul_f32 v5, v5, v6")
        for i in range(8):
            A(f"v_mul_f32 v{O[q]+i}, v{O[q]+i}, v7")
            A(f"v_fma_f32 v{O[q]+i}, v{T+i}, v5, v{O[q]+i}")
        for i in range(4):
            A(f"v_cvt_pk_bf16_f32 v{P[0]+i}, v{O[q]+2*i}, v{O[q]+2*i+1}")
        A(f"s_add_u32 s15, s14, {qi}")
        A(f"s_lshl_b32 s15, s15, 5")
        A(f"s_add_u32 s15, s15, s13")
        A(f"s_lshl_b32 s15, s15, 10")
        A(f"s_add_u32 s15, s15, {WS_OF}")
        A(f"buffer_store_dwordx4 {vr(P[0],4)}, v2, s[8:11], s15 offen{SF}")
        if ffn:
            for i in range(8):
                A(f"v_add_f32 v{F+8*fh+i}, v{F+8*fh+i}, v{T+8+i}")
            A(f"s_lshl_b32 s15, s27, 4")
            A(f"s_add_u32 s15, s15, s33")
            A(f"s_lshl_b32 s15, s15, 12")
            A(f"s_add_u32 s15, s15, {WS_F2 + fh*2048}")
            A(f"buffer_store_dwordx4 {vr(F+8*fh,4)}, v2, s[8:11], s15 offen{SF}")
            A(f"buffer_store_dwordx4 {vr(F+8*fh+4,4)}, v2, s[8:11], s15 offen offset:1024{SF}")
    send(1, 1); recv(0, 0, 0)
    A(f"s_branch {name}_st")
    A.label(f"{name}_x1")
    send(0, 0); recv(1, 1, 1)
    A.label(f"{name}_st")
    if stamps:
        stamp(4)
        A(f"""
        s_waitcnt lgkmcnt(0)
        s_lshl_b32 s54, s2, 3
        s_add_u32 s54, s54, s12
        s_lshl_b32 s54, s54, 5
        v_mov_b32 v10, s54
        v_mov_b32 v12, s40
        v_mov_b32 v13, s42
        v_mov_b32 v14, s44
        v_mov_b32 v15, s46
        v_mov_b32 v16, s48
        v_mov_b32 v17, s48
        s_add_u32 s56, s4, {WS_F2 + 5*MB}
        s_addc_u32 s57, s5, 0
        v_cmp_eq_u32 vcc, 0, v1
        s_and_saveexec_b64 s[58:59], vcc
        global_store_dwordx4 v10, v[12:15], s[56:57]
        global_store_dwordx2 v10, v[16:17], s[56:57] offset:16
        """)
    rt_end(A, rt, 1, 4)
    A.label(f"{name}_end")
    A("s_endpgm")
    A.label(f"{name}_fallback")
    A(f"""
    v_subrev_u32 v3, 0x8000, v3
    v_subrev_u32 v4, 0x8000, v4
    v_mov_b32 v236, v3
    v_mov_b32 v237, v4
    """)
    for q in range(2):
        Sx = S[q]; Vc = V[0]
        A(f"""
        v_mov_b32 v3, v236
        v_mov_b32 v5, 0xff800000
        s_mov_b32 s22, 0
        """)
        A.label(f"{name}_fb1_{q}")
        A(f"""
        ds_read_b128 {vr(K[0],4)}, v3
        s_waitcnt lgkmcnt(0)
        v_mfma_f32_32x32x16_bf16 {vr(Sx,16)}, {vr(K[0],4)}, {vr(Q[q],4)}, 0
        v_add_u32 v3, 0x400, v3
        s_nop 15
        s_nop 3
        """)
        for i in range(0, 16, 2):
            A(f"v_max3_f32 v5, v5, v{Sx+i}, v{Sx+i+1}")
        A(f"""
        s_add_u32 s22, s22, 1
        s_cmp_lt_u32 s22, 32
        s_cbranch_scc1 {name}_fb1_{q}
        """)
        crossneg(5, 6, NEG[q])
        for i in range(16):
            A(f"v_mov_b32 v{O[q]+i}, 0")
        A(f"""
        v_mov_b32 v3, v236
        v_mov_b32 v4, v237
        s_mov_b32 s22, 0
        """)
        A.label(f"{name}_fb2_{q}")
        A(f"""
        ds_read_b128 {vr(K[0],4)}, v3
        s_mov_b64 exec, s[20:21]
        ds_read_b128 {vr(Vc,4)}, v4
        ds_read_b128 {vr(Vc+4,4)}, v4 offset:512
        s_mov_b64 exec, -1
        s_waitcnt lgkmcnt(0)
        v_mfma_f32_32x32x16_bf16 {vr(Sx,16)}, {vr(K[0],4)}, {vr(Q[q],4)}, {vr(NEG[q],16)}
        v_add_u32 v3, 0x400, v3
        v_add_u32 v4, 0x400, v4
        s_nop 15
        s_nop 3
        """)
        for i in range(16):
            A(f"v_exp_f32 v{Sx+i}, v{Sx+i}")
        A("s_nop 0")
        for i in range(8):
            A(f"v_cvt_pk_bf16_f32 v{P[q]+i}, v{Sx+2*i}, v{Sx+2*i+1}")
        A(f"""
        s_nop 1
        v_mfma_f32_32x32x16_bf16 {vr(O[q],16)}, {vr(Vc,4)}, {vr(P[q],4)}, {vr(O[q],16)}
        v_mfma_f32_32x32x16_bf16 {vr(O[q],16)}, {vr(Vc+4,4)}, {vr(P[q]+4,4)}, {vr(O[q],16)}
        s_add_u32 s22, s22, 1
        s_cmp_lt_u32 s22, 32
        s_cbranch_scc1 {name}_fb2_{q}
        s_nop 15
        s_nop 3
        """)
    A(f"s_branch {name}_fin")
    return A.text(), kernel_desc(name, 240, sgpr=100 if rt else 64)

def gen_k3(name="out_kernel", stamps=False, rt=False):
    A = Asm()
    A.raw(kernel_header(name))
    rt_begin(A, rt)
    vACC = 16; vXR = 8
    vB = 32
    A(f"""
    s_cmp_ge_u32 s2, 256
    s_cbranch_scc1 {name}_end
    s_load_dwordx2 s[4:5], s[0:1], 72
    s_load_dwordx2 s[6:7], s[0:1], 0
    s_load_dwordx2 s[24:25], s[0:1], 56
    v_and_b32 v1, 63, v0
    v_lshrrev_b32 v5, 6, v0
    v_lshlrev_b32 v2, 4, v1
    v_readfirstlane_b32 s12, v5
    s_and_b32 s15, s2, 7
    s_lshr_b32 s16, s2, 3
    s_and_b32 s17, s16, 3
    s_lshl_b32 s13, s15, 2
    s_add_u32 s13, s13, s17          ; tb
    s_lshr_b32 s14, s16, 2           ; cbk
    s_and_b32 s15, s12, 1
    s_lshl_b32 s13, s13, 1
    s_add_u32 s13, s13, s15          ; tt
    s_lshr_b32 s15, s12, 1
    s_lshl_b32 s14, s14, 1
    s_add_u32 s14, s14, s15          ; ct
    s_mov_b32 s10, {WS_SIZE}
    s_mov_b32 s11, 0x20000
    s_lshl_b32 s16, s13, 15
    s_add_u32 s16, s16, {WS_OF}
    s_lshl_b32 s17, s14, 15
    s_add_u32 s17, s17, {WS_WOF}
    s_lshl_b32 s18, s13, 4
    s_add_u32 s18, s18, s14
    s_lshl_b32 s18, s18, 12
    s_add_u32 s18, s18, {WS_F2}
    v_and_b32 v5, 31, v1
    v_lshlrev_b32 v5, 10, v5          ; token*1024
    v_lshrrev_b32 v6, 5, v1
    v_lshlrev_b32 v6, 3, v6           ; h*8 bytes
    v_add_u32 v5, v5, v6
    s_lshl_b32 s15, s13, 15           ; tt*32*1024
    s_lshl_b32 s19, s14, 6
    s_add_u32 s15, s15, s19
    s_mov_b32 s30, {2048*512*2}
    s_mov_b32 s31, 0x20000
    s_mov_b32 s34, {2048*512*2}
    s_mov_b32 s35, 0x20000
    s_waitcnt lgkmcnt(0)
    s_mov_b32 s8, s4
    s_and_b32 s9, s5, 0xffff
    s_mov_b32 s28, s6
    s_and_b32 s29, s7, 0xffff
    s_mov_b32 s32, s24
    s_and_b32 s33, s25, 0xffff
    """)
    for g in range(4):
        A(f"buffer_load_dwordx4 {vr(vACC+4*g,4)}, v2, s[8:11], s18 offen offset:{g*1024}")
    for ks in range(32):
        if ks and ks % 4 == 0:
            A("s_add_u32 s16, s16, 4096")
            A("s_add_u32 s17, s17, 4096")
        A(f"buffer_load_dwordx4 {ar(4*ks,4)}, v2, s[8:11], s17 offen offset:{(ks%4)*1024}")
        A(f"buffer_load_dwordx4 {vr(vB+4*ks,4)}, v2, s[8:11], s16 offen offset:{(ks%4)*1024}")
    for g in range(4):
        A(f"buffer_load_dwordx2 {vr(vXR+2*g,2)}, v5, s[28:31], s15 offen offset:{g*16}")
    for ks in range(32):
        n = min(63, 2*(31-ks) + 4)
        A(f"s_waitcnt vmcnt({n})")
        A(f"v_mfma_f32_32x32x16_bf16 {vr(vACC,16)}, {ar(4*ks,4)}, {vr(vB+4*ks,4)}, {vr(vACC,16)}")
    A("s_waitcnt vmcnt(0)")
    A("s_nop 15")
    for g in range(4):
        for p in range(2):
            x = vXR + 2*g + p
            A(f"v_lshlrev_b32 v6, 16, v{x}")
            A(f"v_and_b32 v7, 0xffff0000, v{x}")
            A(f"v_add_f32 v6, v6, v{vACC+4*g+2*p}")
            A(f"v_add_f32 v7, v7, v{vACC+4*g+2*p+1}")
            A(f"v_cvt_pk_bf16_f32 v{x}, v6, v7")
    for g in range(4):
        A(f"buffer_store_dwordx2 {vr(vXR+2*g,2)}, v5, s[32:35], s15 offen offset:{g*16}")
    rt_end(A, rt, 2, 4)
    A.label(f"{name}_end")
    A("s_endpgm")
    return A.text(), kernel_desc(name, 160, sgpr=100 if rt else 40, accum=160, agpr=128)
```

```python
import sys
from asm import *
from build import build
import k1, k2b
st = "stamps" in sys.argv
RT = "rt" in sys.argv
EXP = ([a[4:] for a in sys.argv if a.startswith("exp=")] + [""])[0]
ks = []
t, d = k1.gen_k1(stamps=st, rt=RT); ks.append(("gemm1_kernel", t, d, 256, 512, 163840))
t, d = k2b.gen_k2(stamps=st, ffn=("noffn" not in sys.argv), rt=RT, exp=EXP); ks.append(("attn_kernel", t, d, 256, 512, 131072+64))
t, d = k2b.gen_k3(rt=RT); ks.append(("out_kernel", t, d, 256, 256, 0))
build(sys.argv[1], ks)
```

```python
import sys
from asm import *
from build import build, HDR
import importlib
K1 = importlib.import_module(([a[3:] for a in sys.argv if a.startswith("k1=")] + ["k1d"])[0])
K2 = importlib.import_module(([a[3:] for a in sys.argv if a.startswith("k2=")] + ["k2c"])[0])
st = "stamps" in sys.argv
RT = "rt" in sys.argv
EXP = ([a[4:] for a in sys.argv if a.startswith("exp=")] + [""])[0]
ks = []
t, d = K1.gen_k1(stamps=st, rt=RT, prefetch=("nopf" not in sys.argv)); ks.append(("gemm1_kernel", t, d, 256, 512, 163840))
t, d = K2.gen_k2(stamps=st, ffn=("noffn" not in sys.argv), rt=RT, exp=EXP); ks.append(("attn_kernel", t, d, 256, 512, 131072+64))
t, d = K2.gen_k3(rt=RT, stamps=st); t += "TEXT_END:\n"; ks.append(("out_kernel", t, d, 256, 256, 65536))
build(sys.argv[1], ks)
```

```python
import sys
from asm import *
from build import build, HDR
import importlib
K1 = importlib.import_module(([a[3:] for a in sys.argv if a.startswith("k1=")] + ["k1j"])[0])
K2 = importlib.import_module(([a[3:] for a in sys.argv if a.startswith("k2=")] + ["k2d"])[0])
st = "stamps" in sys.argv
RT = "rt" in sys.argv
EXP = ([a[4:] for a in sys.argv if a.startswith("exp=")] + [""])[0]
ks = []
t, d = K1.gen_k1(stamps=st, rt=RT, prefetch=("nopf" not in sys.argv)); ks.append(("gemm1_kernel", t, d, 256, 512, 163840))
t, d = K2.gen_k2(stamps=st, ffn=("noffn" not in sys.argv), rt=RT, exp=EXP); t += "TEXT_END:\n"; ks.append(("attn_kernel", t, d, 256, 512, 131072+64))
build(sys.argv[1], ks)
```

```python
import sys
def kernel(name, body, iters, vgpr=128, pre="", accum=None):
    accum = accum or vgpr
    return f"""
.text
.globl {name}
.p2align 8
.type {name},@function
{name}:
    s_load_dwordx2 s[4:5], s[0:1], 0
    s_load_dwordx2 s[6:7], s[0:1], 8
    v_lshrrev_b32 v1, 6, v0
    s_nop 0
    v_readfirstlane_b32 s8, v1
    s_waitcnt lgkmcnt(0)
{pre}
    s_barrier
    s_mov_b32 s20, {iters}
    s_memtime s[10:11]
    s_waitcnt lgkmcnt(0)
L_{name}_loop:
{body}
    s_sub_u32 s20, s20, 1
    s_cmp_lg_u32 s20, 0
    s_cbranch_scc1 L_{name}_loop
    s_nop 15
    s_nop 15
    s_memtime s[12:13]
    s_waitcnt lgkmcnt(0)
    s_sub_u32 s12, s12, s10
    s_mul_i32 s14, s2, NW_{name}
    s_add_u32 s14, s14, s8
    s_lshl_b32 s14, s14, 3
    v_mov_b32 v2, s14
    v_mov_b32 v3, s12
    v_cmp_eq_u32 vcc, 0, v0
    v_and_b32 v4, 63, v0
    v_cmp_eq_u32 vcc, 0, v4
    s_and_saveexec_b64 s[16:17], vcc
    global_store_dword v2, v3, s[6:7]
    s_endpgm
.section .rodata,"a"
.p2align 6
.amdhsa_kernel {name}
  .amdhsa_next_free_vgpr {vgpr}
  .amdhsa_next_free_sgpr 64
  .amdhsa_accum_offset {accum}
  .amdhsa_group_segment_fixed_size 0
  .amdhsa_kernarg_size 16
  .amdhsa_user_sgpr_count 2
  .amdhsa_user_sgpr_kernarg_segment_ptr 1
  .amdhsa_system_sgpr_workgroup_id_x 1
.end_amdhsa_kernel
"""
def meta(names, vgpr=128):
    s = ".amdgpu_metadata\n---\namdhsa.version: [1, 2]\namdhsa.kernels:\n"
    for n in names:
        s += f"""  - .name: {n}
    .symbol: {n}.kd
    .kernarg_segment_size: 16
    .kernarg_segment_align: 8
    .group_segment_fixed_size: 0
    .private_segment_fixed_size: 0
    .wavefront_size: 64
    .sgpr_count: 64
    .vgpr_count: {vgpr}
    .max_flat_workgroup_size: 1024
    .args:
      - {{.name: a, .size: 8, .offset: 0, .value_kind: global_buffer, .address_space: global}}
      - {{.name: b, .size: 8, .offset: 8, .value_kind: global_buffer, .address_space: global}}
"""
    s += "...\n.end_amdgpu_metadata\n"
    return s
def build(path, kernels, vgpr=128):
    out = '.amdgcn_target "amdgcn-amd-amdhsa--gfx950"\n'
    for (n, body, iters, nw, pre) in kernels:
        out += f".set NW_{n}, {nw}\n"
        out += kernel(n, body, iters, vgpr, pre)
    out += meta([k[0] for k in kernels], vgpr)
    open(path, "w").write(out)
```

```python
from gen_mb import *
import gen_mb
def vr(a,n): return f"v[{a}:{a+n-1}]"
def ar(a,n): return f"a[{a}:{a+n-1}]"
pre = "\n".join(f"    v_mov_b32 v{i}, 0.5" for i in range(8,128)) + "\n" + "\n".join(f"    v_accvgpr_write_b32 a{i}, 0.5" for i in range(0,64))
def body(qkc="v", pvacc="v", qkd="v", nm=3):
    L=[]
    for half in range(2):
        S_cur = 32 if half==0 else 48
        S_nxt = 48 if half==0 else 32
        P = 64 if half==0 else 72
        Pprev = 72 if half==0 else 64
        exps=[f"    v_exp_f32 v{S_cur+i}, v{S_cur+i}" for i in range(16)]
        cvts=[f"    v_cvt_pk_bf16_f32 v{P+i}, v{S_cur+2*i}, v{S_cur+2*i+1}" for i in range(8)]
        C = {"v": "v[16:31]", "0": "0"}[qkc]
        mqk=f"    v_mfma_f32_32x32x16_bf16 v[{S_nxt}:{S_nxt+15}], v[96:99], v[8:11], {C}"
        acc = "v[80:95]" if pvacc == "v" else "a[0:15]"
        va = "v[104:107]" if pvacc != "aa" else "a[16:19]"
        if pvacc == "aa": acc = "a[0:15]"
        mpv1=f"    v_mfma_f32_32x32x16_bf16 {acc}, {va}, v[{Pprev}:{Pprev+3}], {acc}"
        mpv2=f"    v_mfma_f32_32x32x16_bf16 {acc}, {va}, v[{Pprev+4}:{Pprev+7}], {acc}"
        if nm >= 1: L.append(mqk)
        for i in range(8):
            L+= [exps[2*i],exps[2*i+1]]
            if i>0: L.append(cvts[i-1])
            if i==2 and nm >= 2: L.append(mpv1)
            if i==5 and nm >= 3: L.append(mpv2)
        L.append(cvts[7])
    return "\n".join(L*4)
ks=[]
for nm_, kw in (("base",{}),("qk0",dict(qkc="0")),("pva",dict(pvacc="a")),("both",dict(qkc="0",pvacc="a")),("pvaa",dict(qkc="0",pvacc="aa")),("m1",dict(nm=1)),("m0",dict(nm=0))):
    for nw in (8,):
        ks.append((f"{nm_}_w{nw}", body(**kw), 100, nw, pre))
out = '.amdgcn_target "amdgcn-amd-amdhsa--gfx950"\n'
for (n, b, iters, nw, p) in ks:
    out += f".set NW_{n}, {nw}\n" + gen_mb.kernel(n, b, iters, vgpr=192, pre=p, accum=128)
out += gen_mb.meta([k[0] for k in ks], 192)
open("mb14.s","w").write(out)
```
